```python
import torch

def _softmax(x, axis=-1):
    return torch.softmax(x, dim=axis)
def _gelu(x):
    return torch.nn.functional.gelu(x, approximate="tanh")
def _silu(x):
    return torch.nn.functional.silu(x)
def _sigmoid(x):
    return torch.sigmoid(x)
def _layernorm(x, axis=-1, eps=1e-5):
    m = x.mean(dim=axis, keepdim=True)
    v = x.var(dim=axis, keepdim=True, unbiased=False)
    return (x - m) / torch.sqrt(v + eps)
def _scatter_add(tgt, idx, src, axis=0):
    return tgt.clone().index_add_(axis, idx, src)
def _segment_sum(src, seg, n):
    out = torch.zeros((n,) + src.shape[1:], dtype=src.dtype)
    return out.index_add_(0, seg, src)
def _pad(x, pw):
    flat = tuple(v for pair in reversed(pw) for v in pair)
    return torch.nn.functional.pad(x, flat)

kernel_name = 'sequential_preLN__sliding_local_dilated__geglu_ffn__prompt'

def setup_inputs():

    _w = (lambda a: (lambda t: t.to(torch.bfloat16) if t.is_floating_point() else t)(torch.as_tensor(a)))
    def _A_setup():
        B, S, D = 1, 2048, 512
        return {
            "x": _w((lambda *s: torch.randn(*s, dtype=torch.bfloat16) * 0.05)(B, S, D)),
            "wqkv": _w((lambda *s: torch.randn(*s, dtype=torch.bfloat16) * 0.05)(D, 3 * D)),
            "wo": _w((lambda *s: torch.randn(*s, dtype=torch.bfloat16) * 0.05)(D, D)),
        }
    _A_in = _A_setup()

    def _B_setup():
        B, S, D, F = 1, 2048, 512, 1792
        return {
            "x": _w((lambda *s: torch.randn(*s, dtype=torch.bfloat16) * 0.05)(B, S, D)),
            "w_gate": _w((lambda *s: torch.randn(*s, dtype=torch.bfloat16) * 0.05)(D, F)),
            "w_up": _w((lambda *s: torch.randn(*s, dtype=torch.bfloat16) * 0.05)(D, F)),
            "w_down": _w((lambda *s: torch.randn(*s, dtype=torch.bfloat16) * 0.05)(F, D)),
        }
    _B_in = _B_setup()

    return {
        "A_x": _A_in["x"],
        "A_wqkv": _A_in["wqkv"],
        "A_wo": _A_in["wo"],
        "B_x": _B_in["x"],
        "B_w_gate": _B_in["w_gate"],
        "B_w_up": _B_in["w_up"],
        "B_w_down": _B_in["w_down"],
    }

def reference(A_x, A_wqkv, A_wo, B_x, B_w_gate, B_w_up, B_w_down):
    def _A_ref(x, wqkv, wo):
        B, S, D = x.shape
        H = 32; Dh = D // H
        W, dil = 8, 2
        qkv = (lambda x, *d: x.permute(*d))((x @ wqkv).reshape(B, S, 3, H, Dh), 2, 0, 3, 1, 4)
        q, k, v = qkv[0], qkv[1], qkv[2]
        scale = Dh ** -0.5
        pos = torch.arange(S)
        off = torch.arange(W) * dil
        idx = pos[:, None] - off[None, :]
        mask = idx >= 0
        idx_c = torch.where(mask, idx, 0).reshape(-1)
        kg = k[:, :, idx_c, :].reshape(B, H, S, W, Dh)
        vg = v[:, :, idx_c, :].reshape(B, H, S, W, Dh)
        logits = torch.einsum("bhsd,bhswd->bhsw", q, kg) * scale
        logits = torch.where(mask[None, None, :, :], logits, -1e9)
        attn = _softmax(logits, axis=-1)
        o = torch.einsum("bhsw,bhswd->bhsd", attn, vg)
        return (lambda x, *d: x.permute(*d))(o, 0, 2, 1, 3).reshape(B, S, D) @ wo

    def _B_ref(x, w_gate, w_up, w_down):
        return (_gelu(x @ w_gate) * (x @ w_up)) @ w_down

    x = A_x
    h = x + _A_ref(_layernorm(x, axis=-1), A_wqkv, A_wo)
    h2 = h + _B_ref(_layernorm(h, axis=-1), B_w_gate, B_w_up, B_w_down)
    return h2
```

```python
import re

TRANS = ("v_exp_f32", "v_log_f32", "v_rcp_f32", "v_rsq_f32", "v_sqrt_f32", "v_sin_f32", "v_cos_f32", "v_rcp_iflag_f32")

_reg_re = re.compile(r"^(-|abs\()?([vas])(\d+)\)?$")
_rng_re = re.compile(r"^(-|abs\()?([vas])\[(\d+):(\d+)\]\)?$")


def regs_of(tok):
    tok = tok.strip()
    if tok.startswith("|") and tok.endswith("|"):
        tok = tok[1:-1]
    if tok in ("vcc", "vcc_lo", "vcc_hi"):
        return {("vcc", 0)}
    if tok in ("exec", "exec_lo", "exec_hi"):
        return {("exec", 0)}
    if tok == "m0":
        return {("m0", 0)}
    m = _reg_re.match(tok)
    if m:
        return {(m.group(2), int(m.group(3)))}
    m = _rng_re.match(tok)
    if m:
        return {(m.group(2), i) for i in range(int(m.group(3)), int(m.group(4)) + 1)}
    return set()


def split_ops(s):
    out, depth, cur = [], 0, ""
    for ch in s:
        if ch in "[(":
            depth += 1
        if ch in "])":
            depth -= 1
        if ch == "," and depth == 0:
            out.append(cur.strip()); cur = ""
        else:
            cur += ch
    if cur.strip():
        out.append(cur.strip())
    return out


def mfma_passes(mn):
    if "32x32x16" in mn or "32x32x8" in mn:
        return 8
    if "16x16x32" in mn or "16x16x16" in mn:
        return 4
    raise ValueError(mn)


class Ins:
    __slots__ = ("text", "mn", "kind", "dst", "src", "srcA", "srcC", "passes", "states", "dpp", "wide_store", "lds_dma")

    def __init__(self, text):
        self.text = text
        t = text.split(";")[0].strip()
        parts = t.split(None, 1)
        mn = parts[0]
        self.mn = mn
        rest = parts[1] if len(parts) > 1 else ""
        ops_all = split_ops(rest)
        ops, mods = [], []
        for o in ops_all:
            sp = o.split()
            ops.append(sp[0])
            mods += sp[1:]
        self.dst, self.src, self.srcA, self.srcC = set(), set(), set(), set()
        self.passes = 0
        self.states = 1
        self.dpp = any(m.startswith(("row_", "quad_perm", "wave_", "row_bcast")) for m in mods)
        self.wide_store = False
        self.lds_dma = False
        R = [regs_of(o) for o in ops]
        if mn == "s_nop":
            self.kind = "nop"; self.states = int(ops[0], 0) + 1
        elif mn.startswith("v_mfma"):
            self.kind = "mfma"; self.passes = mfma_passes(mn)
            self.dst = R[0]; self.srcA = R[1] | R[2]; self.srcC = R[3]; self.src = self.srcA | self.srcC
        elif mn.startswith("v_cmpx"):
            raise ValueError("v_cmpx unsupported in dsl")
        elif mn.startswith("v_cmp"):
            self.kind = "valu"; self.dst = R[0]; self.src = set().union(*R[1:])
        elif mn.startswith(("v_readfirstlane", "v_readlane")):
            self.kind = "valu"; self.dst = R[0]; self.src = set().union(*R[1:])
        elif mn.startswith("v_permlane") and "swap" in mn:
            self.kind = "valu"; self.dst = R[0] | R[1]; self.src = R[0] | R[1]
        elif mn.startswith(("v_add_co", "v_sub_co", "v_addc_co", "v_subb_co", "v_subrev_co")):
            self.kind = "valu"; self.dst = R[0] | R[1]; self.src = set().union(*R[2:])
        elif mn.startswith("v_"):
            self.kind = "valu"; self.dst = R[0]; self.src = set().union(*R[1:]) if len(R) > 1 else set()
            if mn.startswith(("v_fmac", "v_pk_fmac", "v_dot2c", "v_writelane")):
                self.src |= R[0]
            if mn.startswith("v_cndmask") and len(ops) == 3:
                self.src |= {("vcc", 0)}
        elif mn.startswith(("ds_read", "ds_bpermute", "ds_permute", "ds_swizzle")):
            self.kind = "ds"; self.dst = R[0]; self.src = set().union(*R[1:])
        elif mn.startswith("ds_"):
            self.kind = "ds"; self.src = set().union(*R)
        elif mn.startswith(("buffer_load", "global_load")):
            self.kind = "vmem"
            if "lds" in mods or "_lds_" in mn:
                self.lds_dma = True; self.src = set().union(*R) | {("m0", 0)}
            else:
                self.dst = R[0]; self.src = set().union(*R[1:])
        elif mn.startswith(("buffer_store", "global_store", "buffer_atomic", "global_atomic")):
            self.kind = "vmem"; self.src = set().union(*R)
            if "x4" in mn or "x3" in mn:
                self.wide_store = True
                self.srcA = R[0] if mn.startswith("buffer") else R[1]
        elif mn.startswith("buffer_"):
            self.kind = "vmem"
        elif mn.startswith("s_"):
            self.kind = "salu"
            if mn.startswith(("s_cmp", "s_cbranch", "s_branch", "s_waitcnt", "s_barrier", "s_endpgm", "s_setprio", "s_sleep", "s_bitcmp")):
                self.src = set().union(*R) if R else set()
            else:
                self.dst = R[0] if R else set(); self.src = set().union(*R[1:]) if len(R) > 1 else set()
                if "saveexec" in mn:
                    self.dst |= {("exec", 0)}
        else:
            raise ValueError("unknown instruction: " + text)


XDL_RAW = {2: 5, 4: 8, 8: 12, 16: 20}
XDL_C_OVERLAP = {2: 4, 4: 6, 8: 10, 16: 18}
XDL_WAR_C = {2: 1, 4: 3, 8: 7, 16: 15}


def vg(s):
    return {r for r in s if r[0] in ("v", "a")}


def sg(s):
    return {r for r in s if r[0] in ("s", "vcc")}


def need(prev, cur):
    n = 0
    if prev.kind == "valu":
        pv = vg(prev.dst); ps = sg(prev.dst)
        if cur.kind == "mfma" and pv & cur.src:
            n = max(n, 2)
        if cur.kind == "valu":
            if prev.mn.startswith(TRANS) and not cur.mn.startswith(TRANS) and pv & (cur.src | cur.dst):
                n = max(n, 1)
            if prev.mn.startswith(TRANS) and cur.mn.startswith(TRANS) and pv & cur.src:
                n = max(n, 1)
            if cur.mn.startswith(("v_readfirstlane", "v_readlane")) and pv & cur.src:
                n = max(n, 1)
            if (cur.mn.startswith("v_permlane") or cur.dpp) and pv & cur.src:
                n = max(n, 2)
            if ps & cur.src:
                n = max(n, 4 if cur.mn.startswith(("v_readlane", "v_writelane")) else 2)
        if cur.kind == "vmem" and ps & cur.src:
            n = max(n, 5)
        if cur.kind == "salu" and ps & cur.src:
            n = max(n, 2)
        if prev.mn.startswith(TRANS) and cur.kind in ("vmem", "ds", "mfma") and pv & cur.src:
            n = max(n, 2)
    if prev.kind == "mfma":
        if cur.kind == "mfma":
            if prev.dst & cur.srcA:
                n = max(n, XDL_RAW[prev.passes])
            if prev.dst & cur.srcC:
                if not (prev.dst == cur.srcC and prev.passes == cur.passes):
                    n = max(n, XDL_C_OVERLAP[prev.passes])
            if prev.dst & cur.dst and not (prev.dst == cur.srcC and prev.passes == cur.passes):
                n = max(n, XDL_RAW[prev.passes])
        else:
            if prev.dst & (cur.src | cur.dst):
                n = max(n, XDL_RAW[prev.passes])
            if prev.srcC & cur.dst:
                n = max(n, XDL_WAR_C[prev.passes])
    if prev.kind == "salu" and ("m0", 0) in prev.dst and cur.lds_dma:
        n = max(n, 1)
    if prev.wide_store and prev.srcA & cur.dst:
        n = max(n, 2)
    return n


class Asm:
    def __init__(self):
        self.lines = []
        self.hist = []

    def raw(self, s):
        self.lines.append(s)

    def label(self, name):
        self.flush_hazards()
        self.lines.append(f"{name}:")

    def flush_hazards(self):
        worst = 0
        dist = 0
        for prev in reversed(self.hist):
            req = 0
            if prev.kind == "mfma":
                req = XDL_RAW[prev.passes]
            elif prev.kind == "valu":
                req = 5 if sg(prev.dst) else 2
            elif prev.kind == "salu" and ("m0", 0) in prev.dst:
                req = 1
            elif prev.wide_store:
                req = 2
            worst = max(worst, req - dist)
            dist += prev.states
            if dist >= 20:
                break
        while worst > 0:
            k = min(worst, 16)
            self._emit(Ins(f"s_nop {k-1}"))
            worst -= k
        self.hist = []

    def _emit(self, ins):
        self.lines.append("    " + ins.text)
        self.hist.append(ins)
        if len(self.hist) > 40:
            self.hist = self.hist[-24:]

    def __call__(self, text):
        for t in text.strip().split("\n"):
            t = t.strip()
            if not t or t.startswith(";"):
                continue
            ins = Ins(t)
            if ins.mn.startswith(("s_cbranch", "s_branch")):
                self.flush_hazards()
            dist = 0
            pad = 0
            for prev in reversed(self.hist):
                r = need(prev, ins)
                if r - dist > pad:
                    pad = r - dist
                dist += prev.states
                if dist >= 20:
                    break
            while pad > 0:
                k = min(pad, 16)
                self._emit(Ins(f"s_nop {k-1}"))
                pad -= k
            self._emit(ins)
            if ins.mn.startswith(("s_cbranch", "s_branch")):
                pass

    def text(self):
        return "\n".join(self.lines)
```

```python
import sys, math
sys.path.insert(0, "tools")
from dsl import Asm

NAME = "sequential_preLN__sliding_local_dilated__geglu_ffn__prompt"
WS_O = 0
WS_H = 2 << 20
WS_ACT = 4 << 20
WS_STATS = 12 << 20
WS_TS = 128 << 20
WS_SIZE = 268435456
KA_X, KA_WQKV, KA_WO, KA_BX, KA_WG, KA_WU, KA_WD, KA_OUT, KA_DBG, KA_WS = [8 * i for i in range(10)]

TIMESTAMPS = False
EXP = set()


def desc(label, vgpr=256, accum=256, sgpr=102):
    return ['.section .rodata,"a"', ".p2align 6", f".amdhsa_kernel {label}",
            f"  .amdhsa_next_free_vgpr {vgpr}", f"  .amdhsa_next_free_sgpr {sgpr}", f"  .amdhsa_accum_offset {accum}",
            "  .amdhsa_group_segment_fixed_size 0", "  .amdhsa_kernarg_size 80", "  .amdhsa_user_sgpr_count 2",
            "  .amdhsa_user_sgpr_kernarg_segment_ptr 1", "  .amdhsa_system_sgpr_workgroup_id_x 1",
            ".end_amdhsa_kernel", ".text"]


def head(label):
    return [f".globl {label}", ".p2align 8", f".type {label},@function", f"{label}:"]


def srd(a, r, src, size):
    a(f"s_mov_b32 s{r}, s{src}")
    a(f"s_and_b32 s{r+1}, s{src+1}, 0xffff")
    a(f"s_mov_b32 s{r+2}, {size}")
    a(f"s_mov_b32 s{r+3}, 0x00020000")


def ts_begin(a):
    if TIMESTAMPS:
        a("s_memrealtime s[96:97]")


STAMPS = []
def stamp(a, name):
    if not TIMESTAMPS:
        return
    i = len(STAMPS)
    STAMPS.append(name)
    a(f"s_memrealtime s[{70+2*i}:{71+2*i}]")


def ts_end(a, kidx, ws_srd):
    if not TIMESTAMPS:
        return
    a("s_waitcnt vmcnt(0)")
    a("s_barrier")
    a("s_memrealtime s[98:99]")
    a("s_waitcnt lgkmcnt(0)")
    a("v_mov_b32 v252, s96\nv_mov_b32 v253, s97\nv_mov_b32 v254, s98\nv_mov_b32 v255, s99")
    a("v_mov_b32 v251, 0")
    a("s_lshl_b32 s92, s2, 4")
    a(f"s_add_u32 s92, s92, {WS_TS + kidx * 4096}")
    a("v_cmp_eq_u32 vcc, 0, v0")
    a("s_and_saveexec_b64 s[94:95], vcc")
    a(f"buffer_store_dwordx4 v[252:255], v251, s[{ws_srd}:{ws_srd+3}], s92 offen")
    for i, nm in enumerate(STAMPS):
        a(f"s_add_u32 s92, s92, {16 * 4096}")
        a(f"v_mov_b32 v254, s{70+2*i}\nv_mov_b32 v255, s{71+2*i}")
        a(f"buffer_store_dwordx4 v[252:255], v251, s[{ws_srd}:{ws_srd+3}], s92 offen")
    print("stamps", kidx, STAMPS)
    STAMPS.clear()
    a("s_mov_b64 exec, s[94:95]")


def ksplit_kernel(label, mode, kidx):
    a = Asm()
    KT = 512 if mode == "wo" else 1792
    NKS = KT // 32
    SPW = NKS // 4
    D = min(SPW, 6)
    for e in EXP:
        if e.startswith("D="): D = min(SPW, int(e[2:]))
    RED = 4 * D * 4096
    A_BASE = WS_O if mode == "wo" else WS_ACT
    ts_begin(a)
    a(f"s_load_dwordx2 s[4:5], s[0:1], {KA_WS}")
    a(f"s_load_dwordx2 s[6:7], s[0:1], {KA_WO if mode == 'wo' else KA_WD}")
    a(f"s_load_dwordx2 s[20:21], s[0:1], {KA_X if mode == 'wo' else KA_OUT}")
    a("s_cmp_ge_u32 s2, 256")
    a(f"s_cbranch_scc1 L_end_{label}")
    a("s_and_b32 s22, s2, 7")
    a("s_lshr_b32 s23, s2, 3")
    a("s_lshl_b32 s22, s22, 2")
    a("s_lshr_b32 s24, s23, 3")
    a("s_add_u32 s24, s24, s22")
    a("s_and_b32 s25, s23, 7")
    a("v_lshrrev_b32 v3, 6, v0")
    a("v_and_b32 v4, 63, v0")
    a("v_readfirstlane_b32 s26, v3")
    a("v_lshlrev_b32 v1, 4, v4")
    a("v_lshrrev_b32 v5, 4, v4")
    a("v_and_b32 v6, 15, v4")
    PERM = (mode == "wo")
    a("v_and_b32 v7, 7, v4")
    if PERM:
        a("v_lshlrev_b32 v8, 1, v5")
    else:
        a("v_and_b32 v8, 1, v5")
        a("v_lshlrev_b32 v8, 1, v8")
    a("v_xor_b32 v7, v7, v8")
    a("v_lshrrev_b32 v8, 3, v4")
    a("v_lshlrev_b32 v8, 10, v8")
    a("v_lshl_add_u32 v2, v7, 4, v8")
    if PERM:
        a("v_mov_b32 v3, v2")
    else:
        a("v_xor_b32 v3, 64, v2")
    a(f"s_mul_i32 s27, s24, {4 * NKS * 1024}")
    a(f"s_mul_i32 s28, s26, {SPW * 1024}")
    a("s_add_u32 s27, s27, s28")
    a(f"s_add_u32 s27, s27, {A_BASE}")
    for t in range(4):
        a(f"s_add_u32 s28, s26, {t}")
        a("s_and_b32 s28, s28, 3")
        a(f"s_mul_i32 s28, s28, {NKS * 1024}")
        a(f"s_add_u32 s{44+t}, s27, s28")
    a(f"s_mul_i32 s28, s26, {SPW * 32 * 1024}")
    a("s_lshl_b32 s29, s25, 7")
    a("s_add_u32 s28, s28, s29")
    a(f"s_mul_i32 s41, s26, {D * 4096}")
    a("s_waitcnt lgkmcnt(0)")
    srd(a, 8, 4, WS_SIZE)
    srd(a, 12, 6, KT * 1024)
    srd(a, 16, 20, 2048 * 1024)
    TB = 32
    FB = TB + 16 * D
    RB = FB + 32

    def issue(s):
        slot = s % D
        base = TB + 16 * slot
        a(f"s_add_u32 m0, s41, {slot * 4096}")
        for i in range(4):
            a(f"s_add_u32 s31, s28, {(32 * s + 8 * i) * 1024 - i * 1024}")
            a(f"buffer_load_dwordx4 v{2 + (i % 2)}, s[12:15], s31 offen offset:{i * 1024} lds")
        for t in range(4):
            a(f"s_add_u32 s30, s{44+t}, {(s // 4) * 4096}")
            a(f"buffer_load_dwordx4 v[{base+4*t}:{base+4*t+3}], v1, s[8:11], s30 offen offset:{(s % 4) * 1024}")

    for s in range(D):
        issue(s)
    a("v_lshlrev_b32 v7, 10, v6")
    a("v_lshl_add_u32 v7, v5, 3, v7")
    a("s_lshl_b32 s32, s24, 16")
    a("s_lshl_b32 s33, s26, 14")
    a("s_add_u32 s32, s32, s33")
    a("s_add_u32 s32, s32, s29")
    a("s_lshl_b32 s34, s24, 2")
    a("s_add_u32 s34, s34, s26")
    a("s_lshl_b32 s34, s34, 14")
    a("s_lshl_b32 s35, s25, 11")
    a("s_add_u32 s34, s34, s35")
    a(f"s_add_u32 s34, s34, {WS_H}")
    if mode == "wo":
        for b in range(4):
            a(f"buffer_load_dwordx2 v[{RB+2*b}:{RB+2*b+1}], v7, s[16:19], s32 offen offset:{b*32}")
        NRES = 4
    else:
        for hh in range(2):
            a(f"buffer_load_dwordx4 v[{RB+4*hh}:{RB+4*hh+3}], v1, s[8:11], s34 offen offset:{hh*1024}")
        NRES = 2
    stamp(a, "issued")
    a("v_bfe_u32 v8, v4, 2, 2")
    a(f"v_lshl_add_u32 v9, v5, {2 if PERM else 3}, v8")
    a("v_lshlrev_b32 v9, 7, v9")
    a("v_and_b32 v10, 3, v4")
    a("v_lshl_add_u32 v9, v10, 3, v9")
    a("v_add_u32 v9, s41, v9")
    a("v_lshrrev_b32 v8, 1, v8")
    a("v_and_b32 v10, 1, v5")
    a("v_lshl_add_u32 v8, v10, 1, v8")
    for b in range(4):
        a(f"v_xor_b32 v10, {b}, v8")
        a(f"v_lshl_add_u32 v{12+b}, v10, 5, v9")
    for i in range(64):
        a(f"v_accvgpr_write_b32 a{i}, 0")
    issued = D

    def reads(s):
        slot = s % D
        fb = FB + 16 * (s % 2)
        for b in range(4):
            for h in range(2):
                if "noread" in EXP: continue
                a(f"ds_read_b64_tr_b16 v[{fb+4*b+2*h}:{fb+4*b+2*h+1}], v{12+b} offset:{slot*4096 + h*(2048 if PERM else 512)}")

    def wait_step(s):
        later = issued - (s + 1)
        n = later * 8 + (NRES if s < D else 0)
        a(f"s_waitcnt vmcnt({n})")

    wait_step(0)
    stamp(a, "first data")
    reads(0)
    for s in range(SPW):
        slot = s % D
        base = TB + 16 * slot
        fb = FB + 16 * (s % 2)
        a("s_waitcnt lgkmcnt(0)")
        if s + 1 < SPW:
            wait_step(s + 1)
            reads(s + 1)
        for b in range(4):
            for t in range(4):
                acc = (b * 4 + t) * 4
                if "nomfma" in EXP: continue
                a(f"v_mfma_f32_16x16x32_bf16 a[{acc}:{acc+3}], v[{fb+4*b}:{fb+4*b+3}], v[{base+4*t}:{base+4*t+3}], a[{acc}:{acc+3}]")
        if issued < SPW:
            issue(issued)
            issued += 1
    stamp(a, "loop done")
    for t in range(1, 4):
        a(f"s_add_u32 s38, s26, {t}")
        a("s_and_b32 s38, s38, 3")
        a(f"s_mul_i32 s38, s38, {12 * 1024}")
        a(f"s_add_u32 s38, s38, {RED + (t - 1) * 4096}")
        a(f"v_add_u32 v{15+t}, s38, v1")
    a(f"s_mul_i32 s38, s26, {12 * 1024}")
    a(f"s_add_u32 s38, s38, {RED}")
    a("v_add_u32 v11, s38, v1")
    for t in range(1, 4):
        for b in range(4):
            acc = (b * 4 + t) * 4
            a(f"ds_write_b128 v{15+t}, a[{acc}:{acc+3}] offset:{b*1024}")
    SB = TB
    for b in range(4):
        for r in range(4):
            a(f"v_accvgpr_read_b32 v{SB + b*4 + r}, a{(b*4)*4 + r}")
    a("s_waitcnt lgkmcnt(0)")
    a("s_barrier")
    for q in range(3):
        for b in range(4):
            r0 = SB + 16 + (q * 4 + b) * 4
            a(f"ds_read_b128 v[{r0}:{r0+3}], v11 offset:{q*4096 + b*1024}")
    TMP = SB + 64
    a("s_waitcnt vmcnt(0)")
    for b in range(4):
        for r in range(4):
            d = RB + 2 * b + r // 2
            if r % 2 == 0:
                a(f"v_lshlrev_b32 v{TMP+(b*4+r)}, 16, v{d}")
            else:
                a(f"v_and_b32 v{TMP+(b*4+r)}, 0xffff0000, v{d}")
    for i in range(8):
        a(f"v_pk_add_f32 v[{SB+2*i}:{SB+2*i+1}], v[{SB+2*i}:{SB+2*i+1}], v[{TMP+2*i}:{TMP+2*i+1}]")
    a("s_waitcnt lgkmcnt(0)")
    stamp(a, "reduced")
    for i in range(8):
        a(f"v_pk_add_f32 v[{SB+16+2*i}:{SB+16+2*i+1}], v[{SB+16+2*i}:{SB+16+2*i+1}], v[{SB+32+2*i}:{SB+32+2*i+1}]")
        a(f"v_pk_add_f32 v[{SB+2*i}:{SB+2*i+1}], v[{SB+2*i}:{SB+2*i+1}], v[{SB+48+2*i}:{SB+48+2*i+1}]")
    for i in range(8):
        a(f"v_pk_add_f32 v[{SB+2*i}:{SB+2*i+1}], v[{SB+2*i}:{SB+2*i+1}], v[{SB+16+2*i}:{SB+16+2*i+1}]")
    OB = TMP + 16
    for i in range(8):
        a(f"v_cvt_pk_bf16_f32 v{OB+i}, v{SB+2*i}, v{SB+2*i+1}")
    if mode == "wo":
        for hh in range(2):
            a(f"buffer_store_dwordx4 v[{OB+4*hh}:{OB+4*hh+3}], v1, s[8:11], s34 offen offset:{hh*1024}")
        for d in range(8):
            a(f"v_lshlrev_b32 v{TMP+2*d}, 16, v{OB+d}")
            a(f"v_and_b32 v{TMP+2*d+1}, 0xffff0000, v{OB+d}")
        S0 = OB + 8; S1 = S0 + 1
        a(f"v_add_f32 v{S0}, v{TMP}, v{TMP+1}")
        a(f"v_mul_f32 v{S1}, v{TMP}, v{TMP}")
        a(f"v_fmac_f32 v{S1}, v{TMP+1}, v{TMP+1}")
        for i in range(2, 16):
            a(f"v_add_f32 v{S0}, v{S0}, v{TMP+i}")
            a(f"v_fmac_f32 v{S1}, v{TMP+i}, v{TMP+i}")
        C0, C1 = S0 + 2, S0 + 3
        for sw in ("v_permlane32_swap_b32", "v_permlane16_swap_b32"):
            a(f"v_mov_b32 v{C0}, v{S0}")
            a(f"v_mov_b32 v{C1}, v{S1}")
            a(f"{sw} v{S0}, v{C0}")
            a(f"{sw} v{S1}, v{C1}")
            a(f"v_add_f32 v{S0}, v{S0}, v{C0}")
            a(f"v_add_f32 v{S1}, v{S1}, v{C1}")
        a("v_lshlrev_b32 v12, 6, v6")
        a("s_lshl_b32 s39, s24, 12")
        a("s_lshl_b32 s40, s26, 10")
        a("s_add_u32 s39, s39, s40")
        a("s_lshl_b32 s40, s25, 3")
        a("s_add_u32 s39, s39, s40")
        a(f"s_add_u32 s39, s39, {WS_STATS}")
        a("s_mov_b64 exec, 0xffff")
        a(f"buffer_store_dwordx2 v[{S0}:{S1}], v12, s[8:11], s39 offen")
        a("s_mov_b64 exec, -1")
    else:
        for b in range(4):
            a(f"buffer_store_dwordx2 v[{OB+2*b}:{OB+2*b+1}], v7, s[16:19], s32 offen offset:{b*32}")
    ts_end(a, kidx, 8)
    a.label(f"L_end_{label}")
    a("s_endpgm")
    return head(label) + a.lines + desc(label, vgpr=256 + 64, accum=256), 256, RED + 48 * 1024


def ffn_kernel(label, kidx):
    a = Asm()
    NS = 16
    D = 9
    UIMG = 65536 + 16
    CSL = 131072 + 64
    ts_begin(a)
    a(f"s_load_dwordx2 s[4:5], s[0:1], {KA_WS}")
    a(f"s_load_dwordx4 s[20:23], s[0:1], {KA_WG}")
    a("s_cmp_ge_u32 s2, 256")
    a(f"s_cbranch_scc1 L_end_{label}")
    a("s_and_b32 s24, s2, 7")
    a("s_lshr_b32 s25, s2, 3")
    a("v_lshrrev_b32 v3, 6, v0")
    a("v_and_b32 v4, 63, v0")
    a("v_readfirstlane_b32 s26, v3")
    a("v_lshlrev_b32 v1, 4, v4")
    a("v_lshrrev_b32 v5, 4, v4")
    a("v_and_b32 v6, 15, v4")
    a("v_and_b32 v7, 7, v4")
    a("v_lshlrev_b32 v8, 1, v5")
    a("v_xor_b32 v7, v7, v8")
    a("v_lshrrev_b32 v8, 3, v4")
    a("v_mul_u32_u24 v8, 3584, v8")
    a("v_lshl_add_u32 v2, v7, 4, v8")
    a(f"s_mul_i32 s28, s26, {8 * 3584}")
    a("s_mul_i32 s29, s25, 112")
    a("s_add_u32 s28, s28, s29")
    a("s_lshl_b32 s27, s24, 18")
    a("s_lshl_b32 s29, s26, 16")
    a("s_add_u32 s27, s27, s29")
    a(f"s_add_u32 s30, s27, {WS_H}")
    a("s_lshl_b32 s41, s26, 10")
    a("s_waitcnt lgkmcnt(0)")
    srd(a, 8, 4, WS_SIZE)
    srd(a, 12, 20, 512 * 3584)
    srd(a, 16, 22, 512 * 3584)
    ACC = 16
    FB = 128
    CS = 184
    AD = 212
    ONES = 220
    STR = 224

    def issue(s):
        slot = s % D
        a(f"s_add_u32 m0, s41, {s * 4096}")
        a(f"s_add_u32 s31, s28, {32 * s * 3584}")
        a("buffer_load_dwordx4 v2, s[12:15], s31 offen lds")
        a(f"s_add_u32 m0, s41, {s * 4096 + UIMG}")
        a("buffer_load_dwordx4 v2, s[16:19], s31 offen lds")
        for t in range(4):
            a(f"s_add_u32 s32, s30, {t * 16384 + (s // 4) * 4096}")
            a(f"buffer_load_dwordx4 a[{slot*16+4*t}:{slot*16+4*t+3}], v1, s[8:11], s32 offen offset:{(s % 4) * 1024}")

    issue(0)
    a("v_lshlrev_b32 v7, 6, v6")
    a("v_lshl_add_u32 v7, v5, 4, v7")
    a("s_lshl_b32 s33, s24, 14")
    a("s_lshl_b32 s34, s26, 12")
    a("s_add_u32 s33, s33, s34")
    a(f"s_add_u32 s33, s33, {WS_STATS}")
    for t in range(4):
        a(f"buffer_load_dwordx4 v[{STR+4*t}:{STR+4*t+3}], v7, s[8:11], s33 offen offset:{t*1024}")
    for s in range(1, D):
        issue(s)
    stamp(a, "issued")
    a("v_bfe_u32 v8, v4, 2, 2")
    a("v_lshl_add_u32 v9, v5, 2, v8")
    a("v_lshlrev_b32 v9, 7, v9")
    a("v_and_b32 v10, 3, v4")
    a("v_lshrrev_b32 v8, 1, v8")
    a("v_and_b32 v11, 1, v5")
    a("v_lshl_add_u32 v8, v11, 1, v8")
    a("v_lshl_add_u32 v12, v10, 3, v9")
    for b in range(3):
        a(f"v_xor_b32 v11, {b}, v8")
        a(f"v_lshl_add_u32 v{AD+b}, v11, 5, v12")
        a(f"v_add_u32 v{AD+3+b}, {UIMG}, v{AD+b}")
    a("v_xor_b32 v11, 3, v8")
    a("v_lshl_add_u32 v12, v11, 5, v9")
    a("v_and_b32 v11, 1, v10")
    a("v_lshl_add_u32 v12, v11, 3, v12")
    a("v_lshrrev_b32 v11, 1, v10")
    a(f"v_mul_u32_u24 v11, {UIMG}, v11")
    a(f"v_add_u32 v{AD+6}, v11, v12")
    for i in range(112):
        a(f"v_mov_b32 v{ACC+i}, 0")
    for i in range(28):
        a(f"v_mov_b32 v{CS+i}, 0")
    for i in range(4):
        a(f"v_mov_b32 v{ONES+i}, 0x3f803f80")
    issued = D

    def reads(s):
        fb = FB + 28 * (s % 2)
        for b in range(7):
            for h in range(2):
                a(f"ds_read_b64_tr_b16 v[{fb+4*b+2*h}:{fb+4*b+2*h+1}], v{AD+b} offset:{s*4096 + h*2048}")

    def wait_step(s):
        later = issued - (s + 1)
        n = later * 6 + (4 if s == 0 else 0)
        a(f"s_waitcnt vmcnt({n})")
        a("s_barrier")

    wait_step(0)
    stamp(a, "first data")
    reads(0)
    for s in range(NS):
        slot = s % D
        fb = FB + 28 * (s % 2)
        a("s_waitcnt lgkmcnt(0)")
        if s + 1 < NS:
            wait_step(s + 1)
            reads(s + 1)
        for b in range(7):
            for t in range(4):
                acc = ACC + (b * 4 + t) * 4
                a(f"v_mfma_f32_16x16x32_bf16 v[{acc}:{acc+3}], v[{fb+4*b}:{fb+4*b+3}], a[{slot*16+4*t}:{slot*16+4*t+3}], v[{acc}:{acc+3}]")
        if issued < NS:
            issue(issued)
            issued += 1
        a(f"s_cmp_eq_u32 s26, {s % 4}")
        a.lines.append(f"    s_cbranch_scc0 L_cs_{label}_{s}")
        for b in range(7):
            a(f"v_mfma_f32_16x16x32_bf16 v[{CS+4*b}:{CS+4*b+3}], v[{fb+4*b}:{fb+4*b+3}], v[{ONES}:{ONES+3}], v[{CS+4*b}:{CS+4*b+3}]")
        a.lines.append(f"L_cs_{label}_{s}:")
    stamp(a, "loop done")
    a(f"s_mul_i32 s35, s26, {7 * 64}")
    a(f"s_add_u32 s35, s35, {CSL}")
    a("v_lshlrev_b32 v8, 4, v5")
    a("v_add_u32 v9, s35, v8")
    a(f"v_add_u32 v8, {CSL}, v8")
    a.flush_hazards()
    a("s_mov_b32 exec_lo, 0x00010001")
    a("s_mov_b32 exec_hi, 0x00010001")
    for b in range(7):
        a(f"ds_write_b128 v9, v[{CS+4*b}:{CS+4*b+3}] offset:{b*64}")
    a("s_mov_b64 exec, -1")
    AB = 240
    for t in range(4):
        r = STR + 4 * t
        a(f"v_add_f32 v{r}, v{r}, v{r+2}")
        a(f"v_add_f32 v{r+1}, v{r+1}, v{r+3}")
        for sw in ("v_permlane32_swap_b32", "v_permlane16_swap_b32"):
            a(f"v_mov_b32 v{r+2}, v{r}")
            a(f"v_mov_b32 v{r+3}, v{r+1}")
            a(f"{sw} v{r}, v{r+2}")
            a(f"{sw} v{r+1}, v{r+3}")
            a(f"v_add_f32 v{r}, v{r}, v{r+2}")
            a(f"v_add_f32 v{r+1}, v{r+1}, v{r+3}")
        a(f"v_mul_f32 v{r}, {1.0/512!r}, v{r}")
        a(f"v_mul_f32 v{r+1}, {1.0/512!r}, v{r+1}")
        a(f"v_fma_f32 v{r+1}, -v{r}, v{r}, v{r+1}")
        a(f"v_max_f32 v{r+1}, 0, v{r+1}")
        a(f"v_add_f32 v{r+1}, 0x3727c5ac, v{r+1}")
        a(f"v_rsq_f32 v{AB+4*t}, v{r+1}")
        a(f"v_mov_b32 v{AB+4*t+1}, v{AB+4*t}")
        a(f"v_mul_f32 v{AB+4*t+2}, v{r}, v{AB+4*t}")
        a(f"v_sub_f32 v{AB+4*t+2}, 0, v{AB+4*t+2}")
        a(f"v_mov_b32 v{AB+4*t+3}, v{AB+4*t+2}")
    a("s_waitcnt lgkmcnt(0)")
    a("s_barrier")
    PB = 128
    for w2 in range(4):
        for b in range(7):
            r0 = PB + (w2 * 7 + b) * 4
            a(f"ds_read_b128 v[{r0}:{r0+3}], v8 offset:{(w2*7+b)*64}")
    a("s_waitcnt lgkmcnt(0)")
    for i in range(14):
        a(f"v_pk_add_f32 v[{PB+2*i}:{PB+2*i+1}], v[{PB+2*i}:{PB+2*i+1}], v[{PB+28+2*i}:{PB+28+2*i+1}]")
        a(f"v_pk_add_f32 v[{PB+56+2*i}:{PB+56+2*i+1}], v[{PB+56+2*i}:{PB+56+2*i+1}], v[{PB+84+2*i}:{PB+84+2*i+1}]")
    for i in range(14):
        a(f"v_pk_add_f32 v[{PB+2*i}:{PB+2*i+1}], v[{PB+2*i}:{PB+2*i+1}], v[{PB+56+2*i}:{PB+56+2*i+1}]")
    stamp(a, "colsum done")
    CSF = PB
    T = 156
    KA_, KB_ = 200, 202
    cA = -2.0 * 0.7978845608028654 * 1.4426950408889634
    cB = cA * 0.044715
    import struct
    f2h = lambda x: "0x%08x" % struct.unpack("<I", struct.pack("<f", x))[0]
    a(f"v_mov_b32 v{KA_}, {f2h(cA)}\nv_mov_b32 v{KA_+1}, {f2h(cA)}")
    a(f"v_mov_b32 v{KB_}, {f2h(cB)}\nv_mov_b32 v{KB_+1}, {f2h(cB)}")
    for b in range(7):
        for t in range(4):
            acc = ACC + (b * 4 + t) * 4
            for h in range(2):
                tmp = T + 2 * ((t * 2 + h) % 8)
                a(f"v_pk_mul_f32 v[{tmp}:{tmp+1}], v[{CSF+4*b+2*h}:{CSF+4*b+2*h+1}], v[{AB+4*t+2}:{AB+4*t+3}]")
                a(f"v_pk_fma_f32 v[{acc+2*h}:{acc+2*h+1}], v[{acc+2*h}:{acc+2*h+1}], v[{AB+4*t}:{AB+4*t+1}], v[{tmp}:{tmp+1}]")
    for t0 in (0, 2):
        for r in range(4):
            a(f"v_permlane32_swap_b32 v{ACC+(24+t0)*4+r}, v{ACC+(24+t0+1)*4+r}")
    a("v_lshrrev_b32 v8, 1, v5")
    a("v_lshlrev_b32 v8, 8, v8")
    a("v_and_b32 v9, 1, v5")
    a("v_lshl_add_u32 v9, v9, 3, v8")
    a("v_lshl_add_u32 v9, v6, 4, v9")
    a("v_and_b32 v10, 1, v5")
    a("v_lshlrev_b32 v10, 3, v10")
    a("v_lshl_add_u32 v10, v6, 4, v10")
    a("v_lshrrev_b32 v8, 1, v5")
    a(f"v_mul_u32_u24 v8, {56*1024}, v8")
    a("v_add_u32 v10, v8, v10")
    a(f"s_mul_i32 s36, s24, {16 * 56 * 1024}")
    a(f"s_mul_i32 s37, s26, {4 * 56 * 1024}")
    a("s_add_u32 s36, s36, s37")
    a(f"s_mul_i32 s37, s25, {7 * 256}")
    a("s_add_u32 s36, s36, s37")
    a(f"s_add_u32 s36, s36, {WS_ACT}")

    def geglu(gr, ur, outr, tb):
        for h in range(2):
            g = f"v[{gr+2*h}:{gr+2*h+1}]"
            t1 = f"v[{tb+4*h}:{tb+4*h+1}]"
            a(f"v_pk_mul_f32 {t1}, {g}, {g}")
            a(f"v_pk_fma_f32 {t1}, {t1}, v[{KB_}:{KB_+1}], v[{KA_}:{KA_+1}]")
            a(f"v_pk_mul_f32 {t1}, {t1}, {g}")
        for h in range(2):
            for e in range(2):
                a(f"v_exp_f32 v{tb+4*h+e}, v{tb+4*h+e}")
        for h in range(2):
            g = f"v[{gr+2*h}:{gr+2*h+1}]"
            u = f"v[{ur+2*h}:{ur+2*h+1}]"
            a(f"v_pk_mul_f32 v[{tb+4*h+2}:{tb+4*h+3}], {g}, {u}")
            a(f"v_pk_add_f32 v[{tb+4*h}:{tb+4*h+1}], v[{tb+4*h}:{tb+4*h+1}], 1.0 op_sel_hi:[1,0]")
        for h in range(2):
            for e in range(2):
                a(f"v_rcp_f32 v{tb+4*h+e}, v{tb+4*h+e}")
        for h in range(2):
            a(f"v_pk_mul_f32 v[{tb+4*h}:{tb+4*h+1}], v[{tb+4*h}:{tb+4*h+1}], v[{tb+4*h+2}:{tb+4*h+3}]")
        for h in range(2):
            a(f"v_cvt_pk_bf16_f32 v{outr+h}, v{tb+4*h}, v{tb+4*h+1}")

    n = 0
    for t in range(4):
        a(f"s_add_u32 s37, s36, {t * 56 * 1024}")
        for p in range(3):
            tb = T + 8 * (n % 4); outr = 190 + 2 * (n % 4); n += 1
            geglu(ACC + (p * 4 + t) * 4, ACC + ((3 + p) * 4 + t) * 4, outr, tb)
            a(f"buffer_store_dwordx2 v[{outr}:{outr+1}], v9, s[8:11], s37 offen offset:{p*512}")
        if t % 2 == 0:
            tb = T + 8 * (n % 4); outr = 190 + 2 * (n % 4); n += 1
            geglu(ACC + (24 + t) * 4, ACC + (24 + t + 1) * 4, outr, tb)
            a(f"buffer_store_dwordx2 v[{outr}:{outr+1}], v10, s[8:11], s37 offen offset:{6*256}")
    ts_end(a, kidx, 8)
    a.label(f"L_end_{label}")
    a("s_endpgm")
    return head(label) + a.lines + desc(label, vgpr=256 + 160, accum=256), 256, CSL + 4 * 7 * 64


def f2h(x):
    import struct
    return "0x%08x" % struct.unpack("<I", struct.pack("<f", x))[0]


def qkv_kernel(label, kidx):
    a = Asm()
    WIMG = 0
    HIMG = 98304
    RING = HIMG + 16384
    NSLOT = 3
    ts_begin(a)
    a(f"s_load_dwordx2 s[4:5], s[0:1], {KA_WS}")
    a(f"s_load_dwordx4 s[20:23], s[0:1], {KA_X}")
    a("s_cmp_ge_u32 s2, 256")
    a(f"s_cbranch_scc1 L_end_{label}")
    a("s_and_b32 s24, s2, 7")
    a("s_lshr_b32 s25, s2, 3")
    a("s_lshl_b32 s24, s24, 1")
    a("s_lshr_b32 s27, s25, 4")
    a("s_add_u32 s24, s24, s27")
    a("s_and_b32 s25, s25, 15")
    a("s_add_u32 s42, s24, s25")
    a("s_and_b32 s42, s42, 7")
    a("v_lshrrev_b32 v3, 6, v0")
    a("v_and_b32 v4, 63, v0")
    a("v_readfirstlane_b32 s26, v3")
    a("v_lshlrev_b32 v1, 4, v4")
    a("v_lshrrev_b32 v5, 4, v4")
    a("v_and_b32 v6, 15, v4")
    a("v_lshrrev_b32 v8, 3, v4")
    a("v_and_b32 v7, 7, v4")
    a("v_xor_b32 v7, v7, v8")
    a("v_lshlrev_b32 v8, 10, v8")
    a("v_lshl_add_u32 v2, v7, 4, v8")
    for j in range(3):
        a(f"v_add_u32 v12, {64*j}, v4")
        a("v_mul_u32_u24 v13, 43691, v12")
        a("v_lshrrev_b32 v13, 19, v13")
        a("v_mul_u32_u24 v14, 12, v13")
        a("v_sub_u32 v14, v12, v14")
        a("v_lshrrev_b32 v15, 1, v14")
        a("v_bfe_u32 v16, v13, 3, 1")
        a("v_sub_u32 v15, v15, v16")
        a("v_add_u32 v16, 6, v15")
        a("v_min_u32 v15, v15, v16")
        a("v_lshrrev_b32 v16, 1, v15")
        a("v_lshlrev_b32 v16, 10, v16")
        a("v_and_b32 v15, 1, v15")
        a("v_lshl_add_u32 v16, v15, 5, v16")
        a("v_and_b32 v14, 1, v14")
        a("v_lshl_add_u32 v16, v14, 4, v16")
        a("v_mul_u32_u24 v13, 3072, v13")
        a(f"v_add_u32 v{9+j}, v13, v16")
    a("s_lshl_b32 s27, s26, 2")
    a("s_lshl_b32 s28, s42, 3")
    for i in range(4):
        a(f"s_add_u32 s29, s27, {i}")
        a("v_xor_b32 v12, s29, v4")
        a("v_add_u32 v12, s28, v12")
        a("v_and_b32 v12, 63, v12")
        a(f"v_lshlrev_b32 v{12+1+i}, 4, v12")
    a("s_lshl_b32 s30, s24, 17")
    a("s_lshl_b32 s31, s26, 15")
    a("s_add_u32 s31, s31, s30")
    a("s_lshl_b32 s32, s26, 12")
    a("s_add_u32 s32, s32, s30")
    a("s_sub_u32 s32, s32, 16384")
    a(f"s_mul_i32 s33, s26, {16 * 3072}")
    a("s_lshl_b32 s34, s25, 6")
    a("s_add_u32 s33, s33, s34")
    a(f"s_mul_i32 s35, s26, {NSLOT * 4096}")
    a(f"s_add_u32 s35, s35, {RING}")
    a(f"s_mul_i32 s36, s26, 3072")
    a("s_lshl_b32 s37, s26, 12")
    a(f"s_add_u32 s37, s37, {HIMG}")
    for c in range(8):
        a(f"s_add_u32 s{48+c}, s42, {c}")
        a(f"s_and_b32 s{48+c}, s{48+c}, 7")
    a("s_waitcnt lgkmcnt(0)")
    srd(a, 8, 4, WS_SIZE)
    srd(a, 12, 20, 2048 * 1024)
    srd(a, 16, 22, 512 * 3072)
    order = []

    def issue_w(c):
        a(f"s_mul_i32 s38, s{48+c}, {64 * 3072}")
        a("s_add_u32 s38, s38, s33")
        for j in range(3):
            a(f"s_add_u32 m0, s36, {WIMG + c * 12288 + j * 1024}")
            a(f"buffer_load_dwordx4 v{9+j}, s[16:19], s38 offen lds")
            order.append(("w", c))

    def issue_t(c):
        a(f"s_lshl_b32 s38, s{48+c}, 7")
        a("s_add_u32 s38, s38, s31")
        a(f"s_add_u32 m0, s35, {(c % NSLOT) * 4096}")
        for i in range(4):
            if i: a(f"s_add_u32 s38, s38, {8192 - 1024}")
            a(f"buffer_load_dwordx4 v2, s[12:15], s38 offen offset:{i*1024} lds")
            order.append(("t", c))

    def issue_h():
        a("s_mov_b32 m0, s37")
        for i in range(4):
            a(f"buffer_load_dwordx4 v{13+i}, s[12:15], s32 offen offset:{i*1024} lds")
            order.append(("h", 0))

    issue_w(0); issue_t(0); issue_h()
    issue_w(1); issue_t(1); issue_w(2); issue_t(2)
    for c in range(3, 8):
        issue_w(c)
    stamp(a, "issued")
    TA0, TA1 = 20, 21
    HA = 22
    WA = 26
    a("v_and_b32 v7, 7, v6")
    a("v_xor_b32 v7, v7, v5")
    a("v_lshlrev_b32 v8, 7, v6")
    a("v_lshl_add_u32 v8, v7, 4, v8")
    a(f"v_add_u32 v{TA0}, s35, v8")
    a(f"v_xor_b32 v{TA1}, 64, v{TA0}")
    for c1 in range(2):
        for h in range(2):
            a(f"v_add_u32 v7, {8*c1 + 4*h}, v5")
            a("v_xor_b32 v7, v7, v6")
            a("v_lshlrev_b32 v8, 10, v6")
            a("v_lshl_add_u32 v8, v7, 4, v8")
            a(f"v_add_u32 v{HA + 2*c1 + h}, {HIMG}, v8")
    a("v_bfe_u32 v7, v4, 2, 2")
    a("v_lshl_add_u32 v7, v5, 3, v7")
    a("v_mul_u32_u24 v7, 192, v7")
    a("v_and_b32 v8, 3, v4")
    a("v_lshl_add_u32 v7, v8, 3, v7")
    a("v_and_b32 v8, 1, v5")
    for b in range(6):
        a(f"v_add_u32 v12, {b}, v8")
        if b == 5:
            a("v_mul_u32_u24 v13, 6, v8")
            a("v_sub_u32 v12, v12, v13")
        a(f"v_lshl_add_u32 v{WA+b}, v12, 5, v7")
    ACC = 32
    RS = 80
    SQ = 88
    HX = 96
    ONES = 104
    FW = 108
    FT = 156
    for i in range(ACC, ONES):
        a(f"v_mov_b32 v{i}, 0")
    for i in range(4):
        a(f"v_mov_b32 v{ONES+i}, 0x3f803f80")
    a("v_cmp_eq_u32 s[44:45], 0, v6")
    base_order = list(order)
    for w in range(1, 4):
        a(f"s_cmp_eq_u32 s26, {w}")
        a(f"s_cbranch_scc1 L_{label}_w{w}")

    for w in range(4):
        if w: a.label(f"L_{label}_w{w}")
        order[:] = base_order

        def wait_chunk(c):
            last = max(i for i, o in enumerate(order) if (o[0] in ("w", "t") and o[1] <= c) or o[0] == "h")
            a(f"s_waitcnt vmcnt({len(order) - 1 - last})")
            a("s_barrier")

        def reads(s):
            c, h = s // 2, s % 2
            fw = FW + 24 * (s % 2); ft = FT + 12 * (s % 2)
            for t in range(2):
                a(f"ds_read_b128 v[{ft+4*t}:{ft+4*t+3}], v{TA0 + h} offset:{(c % NSLOT) * 4096 + t * 2048}")
            a(f"ds_read_b128 v[{ft+8}:{ft+11}], v{HA + 2*(c % 2) + h} offset:{(c // 2) * 256}")
            for b in range(6):
                for h2 in range(2):
                    a(f"ds_read_b64_tr_b16 v[{fw+4*b+2*h2}:{fw+4*b+2*h2+1}], v{WA+b} offset:{(s % 8) * 6144 + h2 * 768}")

        wait_chunk(0)
        if w == 0: stamp(a, "first data")
        reads(0)
        for s in range(16):
            c, h = s // 2, s % 2
            fw = FW + 24 * (s % 2); ft = FT + 12 * (s % 2)
            a("s_waitcnt lgkmcnt(0)")
            if h == 1 and c + NSLOT < 8:
                issue_t(c + NSLOT)
            if s + 1 < 16:
                if h == 1: wait_chunk(c + 1)
                if s + 1 == 8:
                    for b in range(6):
                        a(f"v_add_u32 v{WA+b}, {8*6144}, v{WA+b}")
                reads(s + 1)
            for i in range(4):
                a(f"v_cndmask_b32 v{ft+8+i}, v{ft+8+i}, v{ONES}, s[44:45]")
            W = lambda b: f"v[{fw+4*b}:{fw+4*b+3}]"
            T = lambda t: f"v[{ft+4*t}:{ft+4*t+3}]"
            def mf(acc, A, B):
                a(f"v_mfma_f32_16x16x32_bf16 v[{acc}:{acc+3}], {A}, {B}, v[{acc}:{acc+3}]")
            for t in range(2):
                for b in range(4):
                    mf(ACC + (b * 2 + t) * 4, W(b), T(t))
                for b in range(4, 6):
                    mf(ACC + (b * 2 + t) * 4, T(t), W(b))
                mf(RS + 4 * t, f"v[{ONES}:{ONES+3}]", T(t))
                mf(SQ + 4 * t, T(t), T(t))
            if w < 2:
                mf(HX, W(2 + w), T(2)); mf(HX + 4, W(w), T(2))
            elif w == 2:
                mf(HX, T(2), W(4)); mf(HX + 4, T(2), W(5))
            else:
                mf(HX, f"v[{ONES}:{ONES+3}]", T(2)); mf(HX + 4, T(2), T(2))
        if w == 0: stamp(a, "loop done")
        RB = lambda ww: RING + ww * 12288
        a("v_and_b32 v7, 3, v6")
        a("v_cmp_eq_u32 s[46:47], 1, v7")
        a("v_cmp_eq_u32 s[56:57], 2, v7")
        a("v_cmp_eq_u32 s[58:59], 3, v7")
        a("v_lshrrev_b32 v8, 2, v6")
        a("v_cmp_eq_u32 s[60:61], v8, v5")
        a("v_lshlrev_b32 v9, 3, v6")
        a(f"v_add_u32 v9, {RB(w)}, v9")

        def stats(rs, sq, off):
            a(f"v_cndmask_b32 v10, v{sq}, v{sq+1}, s[46:47]")
            a(f"v_cndmask_b32 v10, v10, v{sq+2}, s[56:57]")
            a(f"v_cndmask_b32 v10, v10, v{sq+3}, s[58:59]")
            a(f"v_mul_f32 v11, {1.0/512!r}, v{rs}")
            a(f"v_mul_f32 v10, {1.0/512!r}, v10")
            a("v_fma_f32 v10, -v11, v11, v10")
            a("v_max_f32 v10, 0, v10")
            a("v_add_f32 v10, 0x3727c5ac, v10")
            a("v_rsq_f32 v12, v10")
            a("v_mul_f32 v13, v11, v12")
            a("v_sub_f32 v13, 0, v13")
            a("s_mov_b64 exec, s[60:61]")
            a(f"ds_write_b64 v9, v[12:13] offset:{off}")
            a("s_mov_b64 exec, -1")
        stats(RS, SQ, 0)
        stats(RS + 4, SQ + 4, 128)
        if w == 3:
            stats(HX, HX + 4, 256)
        a(f"v_add_u32 v10, {RB(w)}, v1")
        for i, b in enumerate((2, 3, 4, 5)):
            acc = ACC + (b * 2 + 1) * 4
            a(f"ds_write_b128 v10, v[{acc}:{acc+3}] offset:{1024 + i*1024}")
        if w < 3:
            a(f"ds_write_b128 v10, v[{HX}:{HX+3}] offset:5120")
            if w == 2:
                a(f"ds_write_b128 v10, v[{HX+4}:{HX+7}] offset:6144")
        if w < 2:
            a("v_lshlrev_b32 v11, 4, v5")
            a(f"v_add_u32 v11, {RB(w)}, v11")
            a("s_mov_b64 exec, s[44:45]")
            a(f"ds_write_b128 v11, v[{HX}:{HX+3}] offset:512")
            a(f"ds_write_b128 v11, v[{HX+4}:{HX+7}] offset:576")
            a("s_mov_b64 exec, -1")
        elif w == 2:
            a("v_lshlrev_b32 v11, 2, v6")
            a(f"v_add_u32 v11, {RB(w)}, v11")
            a("s_mov_b64 exec, 0xffff")
            a(f"ds_write_b32 v11, v{HX} offset:512")
            a(f"ds_write_b32 v11, v{HX+4} offset:576")
            a("s_mov_b64 exec, -1")
        a("s_waitcnt lgkmcnt(0)")
        a("s_barrier")
        SA = 108
        SV = 116
        CQ = 140
        CV = 156
        PR = 160
        a("v_lshlrev_b32 v9, 3, v6")
        a("v_lshlrev_b32 v10, 5, v5")
        a("v_lshlrev_b32 v11, 4, v5")
        a("v_lshlrev_b32 v12, 2, v6")
        for r in (9, 10, 11, 12, 1):
            a(f"v_add_u32 v{r if r != 1 else 13}, {RING}, v{r}")
        rel = lambda ww: ww * 12288
        prev_st = rel(3) + 256 if w == 0 else rel(w - 1) + 128
        for i, off in enumerate((prev_st, rel(w), rel(w) + 128)):
            a(f"ds_read_b64 v[{SA+2*i}:{SA+2*i+1}], v9 offset:{off}")
            a(f"ds_read_b128 v[{SV+8*i}:{SV+8*i+3}], v10 offset:{off}")
            a(f"ds_read_b128 v[{SV+8*i+4}:{SV+8*i+7}], v10 offset:{off+16}")
        for hd in range(2):
            a(f"ds_read_b128 v[{CQ+4*hd}:{CQ+4*hd+3}], v11 offset:{rel(hd) + 576}")
            a(f"ds_read_b128 v[{CQ+8+4*hd}:{CQ+8+4*hd+3}], v11 offset:{rel(hd) + 512}")
            a(f"ds_read_b32 v{CV+hd}, v12 offset:{rel(2) + 512 + 64*hd}")
        if w == 0:
            srcs = (rel(0) + 5120, rel(1) + 5120, rel(2) + 5120, rel(2) + 6144)
        else:
            srcs = tuple(rel(w - 1) + 1024 + i * 1024 for i in range(4))
        for i, off in enumerate(srcs):
            a(f"ds_read_b128 v[{PR+4*i}:{PR+4*i+3}], v13 offset:{off}")
        MC, MP, MP0 = 176, 180, 184
        a("v_lshlrev_b32 v14, 2, v5")
        a("v_sub_u32 v14, v6, v14")
        a(f"v_mov_b32 v15, 0xff800000")
        for r in range(4):
            a(f"v_subrev_u32 v16, {r}, v14")
            a("v_and_b32 v17, 0x80000001, v16")
            a("v_cmp_eq_u32 vcc, 0, v17")
            a(f"v_cndmask_b32 v{MC+r}, v15, 0, vcc")
            a("v_add_u32 v16, 1, v16")
            a("v_and_b32 v17, 0x80000001, v16")
            a("v_cmp_eq_u32 vcc, s62, v17") if False else None
            a("v_xor_b32 v17, 0x80000001, v17")
            a("v_cmp_eq_u32 vcc, 0, v17")
            a(f"v_cndmask_b32 v{MP+r}, v15, 0, vcc")
        if w == 0:
            a("s_cmp_eq_u32 s24, 0")
            a("s_cselect_b32 s62, 0xff800000, 0")
            for r in range(4):
                a(f"v_add_f32 v{MP0+r}, s62, v{MP+r}")
        a("s_waitcnt lgkmcnt(0)")
        PKB = 188
        pk = lambda b, tb: PKB + (b * 3 + tb) * 2
        def src(b, tb):
            return PR + 4 * (b - 2) if tb == 0 else ACC + (b * 2 + tb - 1) * 4
        for tb in range(3):
            for b in range(6):
                if tb == 0 and b < 2: continue
                r0 = src(b, tb)
                for r in range(4):
                    if b < 4:
                        a(f"v_mul_f32 v16, v{CQ+4*b+r}, v{SA+2*tb+1}")
                        a(f"v_fma_f32 v{r0+r}, v{r0+r}, v{SA+2*tb}, v16")
                    else:
                        a(f"v_mul_f32 v16, v{CV+b-4}, v{SV+8*tb+2*r+1}")
                        a(f"v_fma_f32 v{r0+r}, v{r0+r}, v{SV+8*tb+2*r}, v16")
                a(f"v_cvt_pk_bf16_f32 v{pk(b,tb)}, v{r0}, v{r0+1}")
                a(f"v_cvt_pk_bf16_f32 v{pk(b,tb)+1}, v{r0+2}, v{r0+3}")
        a(f"s_mov_b32 s63, {f2h(0.25 * 1.4426950408889634)}")
        SB_ = 32
        OB_ = 64
        PB_ = 80
        OUT = 96
        units = [(t, hd) for t in range(2) for hd in range(2)]
        P2 = lambda r: f"v[{r}:{r+1}]"
        for u, (t, hd) in enumerate(units):
            a(f"v_mfma_f32_16x16x16_bf16 v[{SB_+8*u}:{SB_+8*u+3}], {P2(pk(2+hd, t))}, {P2(pk(hd, t+1))}, 0")
            a(f"v_mfma_f32_16x16x16_bf16 v[{SB_+8*u+4}:{SB_+8*u+7}], {P2(pk(2+hd, t+1))}, {P2(pk(hd, t+1))}, 0")
        MX = 108; SM = 112; TC = 116
        for u, (t, hd) in enumerate(units):
            mp = MP0 if (w == 0 and t == 0) else MP
            for r in range(4):
                a(f"v_fma_f32 v{SB_+8*u+r}, v{SB_+8*u+r}, s63, v{mp+r}")
                a(f"v_fma_f32 v{SB_+8*u+4+r}, v{SB_+8*u+4+r}, s63, v{MC+r}")
            S = lambda i: f"v{SB_+8*u+i}"
            a(f"v_max3_f32 v{MX+u}, {S(0)}, {S(1)}, {S(2)}")
            a(f"v_max3_f32 v{MX+u}, v{MX+u}, {S(3)}, {S(4)}")
            a(f"v_max3_f32 v{MX+u}, v{MX+u}, {S(5)}, {S(6)}")
            a(f"v_max_f32 v{MX+u}, v{MX+u}, {S(7)}")
        for sw in ("v_permlane32_swap_b32", "v_permlane16_swap_b32"):
            for u in range(4):
                a(f"v_mov_b32 v{TC+u}, v{MX+u}")
            for u in range(4):
                a(f"{sw} v{MX+u}, v{TC+u}")
            for u in range(4):
                a(f"v_max_f32 v{MX+u}, v{MX+u}, v{TC+u}")
        for u in range(4):
            for i in range(8):
                a(f"v_sub_f32 v{SB_+8*u+i}, v{SB_+8*u+i}, v{MX+u}")
            for i in range(8):
                a(f"v_exp_f32 v{SB_+8*u+i}, v{SB_+8*u+i}")
        for u in range(4):
            a(f"v_add_f32 v{SM+u}, v{SB_+8*u}, v{SB_+8*u+1}")
            for i in range(2, 8):
                a(f"v_add_f32 v{SM+u}, v{SM+u}, v{SB_+8*u+i}")
        for sw in ("v_permlane32_swap_b32", "v_permlane16_swap_b32"):
            for u in range(4):
                a(f"v_mov_b32 v{TC+u}, v{SM+u}")
            for u in range(4):
                a(f"{sw} v{SM+u}, v{TC+u}")
            for u in range(4):
                a(f"v_add_f32 v{SM+u}, v{SM+u}, v{TC+u}")
        for u in range(4):
            a(f"v_rcp_f32 v{SM+u}, v{SM+u}")
        for u in range(4):
            for i in range(8):
                a(f"v_mul_f32 v{SB_+8*u+i}, v{SB_+8*u+i}, v{SM+u}")
            for i in range(4):
                a(f"v_cvt_pk_bf16_f32 v{PB_+4*u+i}, v{SB_+8*u+2*i}, v{SB_+8*u+2*i+1}")
        for u, (t, hd) in enumerate(units):
            a(f"v_mfma_f32_16x16x16_bf16 v[{OB_+4*u}:{OB_+4*u+3}], {P2(pk(4+hd, t))}, {P2(PB_+4*u)}, 0")
        for u, (t, hd) in enumerate(units):
            a(f"v_mfma_f32_16x16x16_bf16 v[{OB_+4*u}:{OB_+4*u+3}], {P2(pk(4+hd, t+1))}, {P2(PB_+4*u+2)}, v[{OB_+4*u}:{OB_+4*u+3}]")
        a("s_lshl_b32 s38, s24, 17")
        a("s_lshl_b32 s39, s25, 10")
        a("s_add_u32 s38, s38, s39")
        a(f"s_add_u32 s38, s38, {WS_O + 2 * w * 16384}")
        for u, (t, hd) in enumerate(units):
            a(f"v_cvt_pk_bf16_f32 v{OUT+4*t+2*hd}, v{OB_+4*u}, v{OB_+4*u+1}")
            a(f"v_cvt_pk_bf16_f32 v{OUT+4*t+2*hd+1}, v{OB_+4*u+2}, v{OB_+4*u+3}")
        for t in range(2):
            if t: a("s_add_u32 s38, s38, 16384")
            a(f"buffer_store_dwordx4 v[{OUT+4*t}:{OUT+4*t+3}], v1, s[8:11], s38 offen")
        if w < 3:
            a(f"s_branch L_{label}_join")
    a.label(f"L_{label}_join")
    ts_end(a, kidx, 8)
    a.label(f"L_end_{label}")
    a("s_endpgm")
    return head(label) + a.lines + desc(label, vgpr=256, accum=256), 256, RING + 4 * NSLOT * 4096


def build(fn, kernels):
    o = []
    hdr = open(f"cdna_kernels/{NAME}.s.ref").read().split("; Override launch")[0].rstrip("\n").split("\n")
    o += hdr
    for (label, (body, thr, lds)) in kernels:
        o.append(f"; @launch kernel={label} grid=(256,1,1) block=({thr},1,1) lds={lds}")
    o += ['.amdgcn_target "amdgcn-amd-amdhsa--gfx950"', ".text"]
    for (label, (body, thr, lds)) in kernels:
        o += body
    open(fn, "w").write("\n".join(o) + "\n")


if __name__ == "__main__":
    import argparse
    ap = argparse.ArgumentParser()
    ap.add_argument("--ts", action="store_true")
    ap.add_argument("--only", default="")
    ap.add_argument("--exp", default="")
    ap.add_argument("-o", default=f"cdna_kernels/{NAME}.s")
    args = ap.parse_args()
    TIMESTAMPS = args.ts
    EXP = set(args.exp.split(",")) if args.exp else set()
    ks = []
    sel = args.only.split(",") if args.only else ["k1", "k2", "k3", "k4"]
    if "k1" in sel: ks.append(("k1_qkv_kernel", qkv_kernel("k1_qkv_kernel", 0)))
    if "k2" in sel: ks.append(("k2_wo_kernel", ksplit_kernel("k2_wo_kernel", "wo", 1)))
    if "k3" in sel: ks.append(("k3_ffn_kernel", ffn_kernel("k3_ffn_kernel", 2)))
    if "k4" in sel: ks.append(("k4_down_kernel", ksplit_kernel("k4_down_kernel", "down", 3)))
    build(args.o, ks)
```

```python
import sys, math, struct
sys.path.insert(0, "tools")
from dsl import Asm

NAME = "sequential_preLN__sliding_local_dilated__geglu_ffn__prompt"
WS_O = 0
WS_H = 2 << 20
WS_ACT = 4 << 20
WS_STATS = 12 << 20
WS_FLAG = 13 << 20
WS_TS = 128 << 20
WS_SIZE = 268435456

TIMESTAMPS = False
EXP = set()
STAMPS = []
SC1 = " sc1"

P1_H, P1_RING, P1_SLOT, P1_NSLOT = 0, 16384, 28672, 5
P1_EX = 131328
P2_W = 0
P2_RED = 131328
P3_G, P3_U, P3_CS = 65552, 0, 148480
GATE_EARLY = 16
LFLAG = 163584
WARM_AT = 7


def f2h(x):
    return "0x%08x" % struct.unpack("<I", struct.pack("<f", x))[0]


def srd(a, r, src, size):
    a(f"s_mov_b32 s{r}, s{src}")
    a(f"s_and_b32 s{r+1}, s{src+1}, 0xffff")
    a(f"s_mov_b32 s{r+2}, {size}")
    a(f"s_mov_b32 s{r+3}, 0x00020000")


def stamp(a, name):
    if not TIMESTAMPS:
        return
    if name in STAMPS:
        i = STAMPS.index(name)
    else:
        i = len(STAMPS); STAMPS.append(name)
    a("s_memtime s[96:97]" if "cyc" in EXP else "s_memrealtime s[96:97]")
    a("s_waitcnt lgkmcnt(0)")
    a(f"v_writelane_b32 v2, s96, {i}")
    a(f"v_writelane_b32 v3, s97, {i}")


def interleave(a, main, side):
    ext = {}
    for pos, t in side:
        ext.setdefault(min(pos, len(main) - 1), []).append(t)
    for t in ext.get(-1, []):
        a(t)
    for i, m in enumerate(main):
        a(m)
        for t in ext.get(i, []):
            a(t)


def spread(items, start, end):
    n = len(items)
    return [(start + (i * (end - start)) // max(n, 1), t) for i, t in enumerate(items)]


class VM:
    def __init__(self):
        self.order = []

    def add(self, tag):
        self.order.append(tag)

    def wait_for(self, a, pred):
        idx = [i for i, t in enumerate(self.order) if pred(t)]
        if not idx:
            return
        n = len(self.order) - 1 - max(idx)
        a(f"s_waitcnt vmcnt({min(n, 63)})")


class Bars:
    def __init__(self):
        self.seq = []

    def __call__(self, a, name):
        self.seq.append(name)
        a("s_barrier")


def common(a, label):
    stamp(a, "start")
    a("s_load_dwordx16 s[64:79], s[0:1], 0")
    a("s_load_dwordx4 s[80:83], s[0:1], 64")
    a("s_cmp_ge_u32 s2, 256")
    a(f"s_cbranch_scc1 L_end_{label}")
    a("s_and_b32 s24, s2, 7")
    a("s_lshr_b32 s25, s2, 3")
    a("v_lshrrev_b32 v7, 6, v0")
    a("v_and_b32 v4, 63, v0")
    a("v_readfirstlane_b32 s26, v7")
    a("v_lshlrev_b32 v1, 4, v4")
    a("v_lshrrev_b32 v5, 4, v4")
    a("v_and_b32 v6, 15, v4")
    a("s_memrealtime s[90:91]")
    a("s_and_b32 s27, s26, 3")
    a("s_lshr_b32 s28, s25, 3")
    a("s_and_b32 s93, s25, 7")
    a("s_lshl_b32 s92, s24, 2")
    a("s_add_u32 s92, s92, s28")
    a("s_and_b32 s94, s24, 4")
    a("s_add_u32 s94, s94, s28")
    a("s_and_b32 s95, s24, 3")
    a("s_lshl_b32 s95, s95, 3")
    a("s_add_u32 s95, s95, s93")
    a("s_lshr_b32 s29, s24, 1")
    a("s_lshl_b32 s29, s29, 2")
    a("s_add_u32 s29, s29, s28")
    a("s_and_b32 s43, s24, 1")
    a("s_lshl_b32 s43, s43, 3")
    a("s_add_u32 s43, s43, s93")
    a("v_lshlrev_b32 v7, 2, v4")
    a(f"v_add_u32 v7, {LFLAG}, v7")
    a("v_mov_b32 v8, 0")
    a("ds_write_b32 v7, v8")
    a("s_cmp_ge_u32 s26, 4")
    a(f"s_cbranch_scc1 L_{label}_helper")


def flag_store(a, label, phase, tile_sreg):
    a("s_cmp_lg_u32 s26, 4")
    a(f"s_cbranch_scc1 L_{label}_sig{phase}")
    a(f"s_lshl_b32 s40, s{tile_sreg}, 7")
    a(f"s_add_u32 s40, s40, {WS_FLAG + (phase - 1) * 32768}")
    a("v_mov_b32 v8, s88")
    a("v_mov_b32 v9, 0")
    a("s_mov_b64 exec, 1")
    a("buffer_store_dword v8, v9, s[4:7], s40 offen sc1")
    a("s_mov_b64 exec, -1")
    a.label(f"L_{label}_sig{phase}")


def flag_poll(a, label, phase, first_sreg, n):
    a("s_cmp_lg_u32 s26, 4")
    a(f"s_cbranch_scc1 L_{label}_wt{phase}")
    a("s_mov_b32 s40, 0")
    a("v_lshlrev_b32 v8, 7, v4")
    a(f"s_lshl_b32 s41, s{first_sreg}, 7")
    a(f"s_add_u32 s41, s41, {WS_FLAG + (phase - 1) * 32768}")
    a(f"s_mov_b64 exec, {hex((1 << n) - 1)}")
    a.label(f"L_{label}_pl{phase}")
    a("buffer_load_dword v9, v8, s[4:7], s41 offen sc1")
    a("s_add_u32 s40, s40, 1")
    a("s_waitcnt vmcnt(0)")
    a("v_cmp_ne_u32 vcc, s88, v9")
    a("s_cmp_gt_u32 s40, 0x40000")
    a(f"s_cbranch_scc1 L_{label}_px{phase}")
    a(f"s_cbranch_vccnz L_{label}_pl{phase}")
    a.label(f"L_{label}_px{phase}")
    if phase < 3:
        a("s_mov_b64 exec, 1")
        a(f"ds_write_b32 v31, v19 offset:{64 + 4*phase}")
    a("s_mov_b64 exec, -1")
    a.label(f"L_{label}_wt{phase}")


def wait_lds(a, name, areg, treg, off, val=1):
    a.label(name)
    a(f"ds_read_b32 v{treg}, v{areg} offset:{off}")
    a("s_waitcnt lgkmcnt(0)")
    a(f"v_readfirstlane_b32 s40, v{treg}")
    a(f"s_cmp_lt_u32 s40, {val}")
    a(f"s_cbranch_scc1 {name}")


def helper(a, label, bar):
    a.label(f"L_{label}_helper")
    NSLOT = P1_NSLOT
    a("v_lshrrev_b32 v8, 3, v4")
    a("v_and_b32 v7, 7, v4")
    a("v_xor_b32 v7, v7, v8")
    a("v_lshlrev_b32 v8, 10, v8")
    a("v_lshl_add_u32 v20, v7, 4, v8")
    for j in range(3):
        a(f"v_add_u32 v12, {64*j}, v4")
        a("v_mul_u32_u24 v13, 43691, v12")
        a("v_lshrrev_b32 v13, 19, v13")
        a("v_mul_u32_u24 v14, 12, v13")
        a("v_sub_u32 v14, v12, v14")
        a("v_lshrrev_b32 v15, 1, v14")
        a("v_bfe_u32 v16, v13, 3, 1")
        a("v_sub_u32 v15, v15, v16")
        a("v_add_u32 v16, 6, v15")
        a("v_min_u32 v15, v15, v16")
        a("v_lshrrev_b32 v16, 1, v15")
        a("v_lshlrev_b32 v16, 10, v16")
        a("v_and_b32 v15, 1, v15")
        a("v_lshl_add_u32 v16, v15, 5, v16")
        a("v_and_b32 v14, 1, v14")
        a("v_lshl_add_u32 v16, v14, 4, v16")
        a("v_mul_u32_u24 v13, 3072, v13")
        a(f"v_add_u32 v{21+j}, v13, v16")
    if "rot4" in EXP:
        a("s_and_b32 s42, s25, 3"); a("s_lshl_b32 s42, s42, 1"); a("s_add_u32 s42, s42, s24")
    elif "rot2" in EXP:
        a("s_and_b32 s42, s25, 1"); a("s_lshl_b32 s42, s42, 2"); a("s_add_u32 s42, s42, s24")
    elif "rot8" in EXP:
        a("s_add_u32 s42, s29, s43")
    elif "rotm" in EXP:
        a("s_lshr_b32 s42, s25, 3"); a("s_lshl_b32 s42, s42, 1"); a("s_add_u32 s42, s42, s24")
    elif "rotx" in EXP:
        a("s_mov_b32 s42, s24")
    else:
        a("s_add_u32 s42, s29, s43")
    a("s_and_b32 s42, s42, 7")
    a("s_lshl_b32 s30, s27, 2")
    a("s_lshl_b32 s31, s42, 3")
    for i in range(4):
        a(f"s_add_u32 s32, s30, {i}")
        a("v_xor_b32 v12, s32, v4")
        a("v_add_u32 v12, s31, v12")
        a("v_and_b32 v12, 63, v12")
        a(f"v_lshlrev_b32 v{24+i}, 4, v12")
    a("s_lshl_b32 s30, s29, 17")
    a("s_lshl_b32 s31, s27, 15")
    a("s_add_u32 s31, s31, s30")
    a("s_lshl_b32 s32, s27, 12")
    a("s_add_u32 s32, s32, s30")
    a("s_sub_u32 s32, s32, 16384")
    a(f"s_mul_i32 s33, s27, {16 * 3072}")
    a("s_lshl_b32 s34, s43, 6")
    a("s_add_u32 s33, s33, s34")
    a("s_lshl_b32 s35, s27, 12")
    a(f"s_add_u32 s35, s35, {P1_RING}")
    a("s_mul_i32 s36, s27, 3072")
    a(f"s_add_u32 s36, s36, {P1_RING + 16384}")
    a("s_lshl_b32 s37, s27, 12")
    a(f"s_add_u32 s37, s37, {P1_H}")
    for c in range(8):
        a(f"s_add_u32 s{48+c}, s42, {c}")
        a(f"s_and_b32 s{48+c}, s{48+c}, 7")
    a("s_waitcnt lgkmcnt(0)")
    srd(a, 4, 82, WS_SIZE)
    srd(a, 8, 64, 2048 * 1024)
    srd(a, 16, 66, 512 * 3072)
    vm = VM()

    def issue_w(c):
        a(f"s_mul_i32 s38, s{48+c}, {64 * 3072}")
        a("s_add_u32 s38, s38, s33")
        for j in range(3):
            a(f"s_add_u32 m0, s36, {(c % NSLOT) * P1_SLOT + j * 1024}")
            a(f"buffer_load_dwordx4 v{21+j}, s[16:19], s38 offen lds")
            vm.add(("w", c))

    def issue_t(c):
        a(f"s_lshl_b32 s39, s{48+c}, 7")
        a("s_add_u32 s39, s39, s31")
        a(f"s_add_u32 m0, s35, {(c % NSLOT) * P1_SLOT}")
        for i in range(4):
            if i:
                a(f"s_add_u32 s39, s39, {8192 - 1024}")
            a(f"buffer_load_dwordx4 v20, s[8:11], s39 offen offset:{i*1024} lds")
            vm.add(("t", c))

    issue_w(0); issue_t(0)
    a("s_mov_b32 m0, s37")
    for i in range(4):
        a(f"buffer_load_dwordx4 v{24+i}, s[8:11], s32 offen offset:{i*1024} lds")
        vm.add(("h", 0))
    issue_w(1); issue_t(1)
    a("s_lshl_b32 s40, s2, 3")
    a("s_add_u32 s40, s40, s26")
    srd(a, 20, 80, 256)
    a("s_cmp_lg_u32 s40, 7")
    a(f"s_cbranch_scc1 L_{label}_noep")
    a("s_max_u32 s90, s90, 1")
    a("v_mov_b32 v17, s90")
    a("v_mov_b32 v18, 0")
    a("s_mov_b64 exec, 1")
    a("buffer_store_dword v17, v18, s[20:23], 0 offen sc1")
    a("s_mov_b64 exec, -1")
    a("s_waitcnt vmcnt(0)")
    a.label(f"L_{label}_noep")
    a("v_and_b32 v7, 7, v4")
    a("v_lshlrev_b32 v8, 1, v5")
    a("v_xor_b32 v7, v7, v8")
    a("v_lshrrev_b32 v8, 3, v4")
    a("v_lshlrev_b32 v9, 10, v8")
    a("v_lshl_add_u32 v28, v7, 4, v9")
    a("v_mul_u32_u24 v9, 3584, v8")
    a("v_lshl_add_u32 v29, v7, 4, v9")
    a("s_lshl_b32 s44, s27, 13")
    a("s_lshl_b32 s45, s93, 7")
    a("s_add_u32 s44, s44, s45")
    a(f"s_mul_i32 s45, s27, {8 * 3584}")
    a("s_mul_i32 s46, s95, 112")
    a("s_add_u32 s45, s45, s46")
    a("s_lshl_b32 s46, s27, 10")
    srd(a, 12, 68, 512 * 1024)
    a("s_cmp_lt_u32 s27, 2")
    a("s_cselect_b32 s56, s72, s74")
    a("s_cselect_b32 s57, s73, s75")
    a("s_and_b32 s57, s57, 0xffff")
    a(f"s_mov_b32 s58, {512*3584}")
    a("s_mov_b32 s59, 0x00020000")
    a("s_lshl_b32 s60, s25, 4")
    a("s_and_b32 s61, s27, 1")
    a("s_lshl_b32 s61, s61, 3")
    a("s_add_u32 s60, s60, s61")
    a("s_mul_i32 s60, s60, 3584")
    a("s_and_b32 s61, s24, 3")
    a("s_mul_i32 s61, s61, 896")
    a("s_add_u32 s60, s60, s61")
    a("s_lshl_b32 s61, s25, 14")
    a("s_lshl_b32 s47, s27, 12")
    a("s_add_u32 s61, s61, s47")
    warm = [f"buffer_load_dwordx4 v[{64+4*i}:{64+4*i+3}], v1, s[12:15], s61 offen offset:{i * 1024}" for i in range(4)]
    warm += [f"s_add_u32 s47, s60, {i * 3584}\nbuffer_load_dwordx4 v[{80+4*i}:{80+4*i+3}], v1, s[56:59], s47 offen" for i in range(8)]
    if "nopf" in EXP:
        warm = []
    a(f"v_mov_b32 v31, {LFLAG}")
    a("v_mov_b32 v19, 1")
    a("s_waitcnt lgkmcnt(0)")
    bar(a, "Z")

    def landed(c):
        vm.wait_for(a, lambda t: (t[0] in ("w", "t") and t[1] <= c) or t[0] == "h")
        a("s_mov_b64 exec, 1")
        a(f"ds_add_u32 v31, v19 offset:{4*c}")
        a("s_mov_b64 exec, -1")

    def wait_consumed(c):
        a.label(f"L_{label}_hc{c}")
        a(f"ds_read_b32 v17, v31 offset:{32 + 4*c}")
        a("s_waitcnt lgkmcnt(0)")
        a("v_readfirstlane_b32 s40, v17")
        a("s_cmp_lt_u32 s40, 4")
        a(f"s_cbranch_scc1 L_{label}_hc{c}")
    for op in "L0 I2 L1 I3 I4 L2 C0 I5 L3 C1 I6 L4 C2 I7 L5 L6 L7".split():
        c = int(op[1])
        if op[0] == "L":
            landed(c)
        elif op[0] == "C":
            wait_consumed(c)
        else:
            issue_w(c); issue_t(c)
    for x in warm:
        a(x); vm.add(("pf", 0))
    a("v_mov_b32 v18, 0")
    a("buffer_load_dword v30, v18, s[20:23], 0 offen sc1")
    vm.add(("ep", 0))
    srd(a, 16, 72, 512 * 3584)

    def p2_w_dma(i):
        a(f"s_add_u32 m0, s46, {P2_W + i * 4096}")
        a(f"s_add_u32 s47, s44, {32 * i * 1024}")
        a("buffer_load_dwordx4 v28, s[12:15], s47 offen lds")
        vm.add(("w2", i))

    def p3_w_dma(img, i, sr):
        a(f"s_add_u32 m0, s46, {img + i * 4096}")
        a(f"s_add_u32 s47, s45, {32 * i * 3584}")
        a(f"buffer_load_dwordx4 v29, s[{sr}:{sr+3}], s47 offen lds")
        vm.add(("w3", i))
    bar(a, "A1")
    for i in range(16):
        p2_w_dma(i)
    for i in range(GATE_EARLY):
        p3_w_dma(P3_G, i, 16)
    vm.wait_for(a, lambda t: t[0] == "w2")
    a("v_readfirstlane_b32 s88, v30")
    a("s_cmp_lg_u32 s88, 0")
    a(f"s_cbranch_scc1 L_{label}_epx")
    a("s_mov_b32 s40, 0")
    a.label(f"L_{label}_ep")
    a("buffer_load_dword v30, v18, s[20:23], 0 offen sc1")
    a("s_add_u32 s40, s40, 1")
    a("s_waitcnt vmcnt(0)")
    a("v_readfirstlane_b32 s88, v30")
    a("s_cmp_gt_u32 s40, 0x40000")
    a(f"s_cbranch_scc1 L_{label}_epx")
    a("s_cmp_eq_u32 s88, 0")
    a(f"s_cbranch_scc1 L_{label}_ep")
    a.label(f"L_{label}_epx")
    a("s_lshl_b32 s89, s29, 4")
    a("s_add_u32 s89, s89, s43")
    srd(a, 12, 74, 512 * 3584)
    bar(a, "L1")
    for i in range(GATE_EARLY, 16):
        p3_w_dma(P3_G, i, 16)
    bar(a, "S1")
    flag_store(a, label, 1, 89)
    a("s_cmp_eq_u32 s26, 4")
    a(f"s_cbranch_scc1 L_{label}_noups")
    a(f"s_sub_u32 s37, s45, {8 * 3584}")
    a("s_sub_u32 s38, s46, 1024")
    for i in range(22):
        if i == 21:
            a("s_cmp_lg_u32 s26, 5")
            a(f"s_cbranch_scc1 L_{label}_noups")
        a(f"s_add_u32 m0, s38, {P3_U + i * 3072}")
        a(f"s_add_u32 s47, s37, {24 * i * 3584}")
        a("buffer_load_dwordx4 v29, s[12:15], s47 offen lds")
    a.label(f"L_{label}_noups")
    a("s_lshr_b32 s89, s92, 1")
    a("s_lshl_b32 s89, s89, 4")
    flag_poll(a, label, 1, 89, 16)
    a("s_waitcnt vmcnt(0)")
    bar(a, "R2")
    srd(a, 12, 76, 1792 * 1024)
    a("v_lshrrev_b32 v12, 3, v4")
    a("v_and_b32 v13, 7, v4")
    a("v_and_b32 v14, 1, v5")
    a("v_lshlrev_b32 v14, 1, v14")
    a("s_and_b32 s44, s27, 1")
    a("s_lshl_b32 s44, s44, 2")
    a("v_xor_b32 v13, v13, v14")
    a("v_xor_b32 v13, s44, v13")
    a("v_lshlrev_b32 v13, 4, v13")
    a("v_lshrrev_b32 v14, 2, v12")
    a("v_lshl_add_u32 v36, v12, 10, v13")
    a("v_lshl_add_u32 v34, v14, 12, v36")
    a("v_mul_u32_u24 v14, 12288, v14")
    a("v_add_u32 v32, v14, v36")
    a("v_xor_b32 v33, 64, v32")
    a("v_xor_b32 v35, 64, v34")
    a("v_xor_b32 v37, 64, v36")
    a("s_lshl_b32 s45, s93, 7")
    a(f"s_mul_i32 s46, s27, {56 * 1024}")
    a("s_add_u32 s45, s45, s46")
    a(f"s_mul_i32 s46, s27, {7 * 1024}")
    a("s_lshl_b32 s89, s92, 3")
    a("s_add_u32 s89, s89, s93")
    bar(a, "S2")
    flag_store(a, label, 2, 89)
    a("s_lshl_b32 s89, s94, 5")
    flag_poll(a, label, 2, 89, 32)
    wait_lds(a, f"L_{label}_hf2", 31, 17, 64 + 8)
    if "nohw" not in EXP:
        a("s_lshl_b32 s40, s94, 18")
        a("s_lshl_b32 s41, s27, 16")
        a("s_add_u32 s40, s40, s41")
        a("s_lshl_b32 s41, s93, 11")
        a("s_add_u32 s40, s40, s41")
        a(f"s_add_u32 s40, s40, {WS_H}")
        for t in range(4):
            for q in range(2):
                a(f"s_add_u32 s41, s40, {t * 16384}")
                a(f"buffer_load_dwordx4 v[{128+8*t+4*q}:{128+8*t+4*q+3}], v1, s[4:7], s41 offen offset:{q*1024}{SC1}")
    if "nopf" not in EXP:
        a("s_sleep 32")
        a(f"s_mul_i32 s40, s25, {56 * 1024}")
        a(f"s_mul_i32 s41, s27, {14 * 1024}")
        a("s_add_u32 s40, s40, s41")
        for i in range(14):
            a(f"s_add_u32 s41, s40, {i * 1024}")
            a(f"buffer_load_dwordx4 v[{64+4*i}:{64+4*i+3}], v1, s[12:15], s41 offen")
            a("s_sleep 4")
    a("s_lshl_b32 s89, s94, 5")
    a("s_add_u32 s89, s89, s95")
    bar(a, "A3")

    def p4_w_dma(i):
        m, j = i // 7, i % 7
        rowbase = 4 * j if j < 4 else (32 + 4 * (j - 4) if j < 6 else 48)
        vreg = 32 + (j % 2) if j < 4 else (34 + (j % 2) if j < 6 else 36)
        a(f"s_add_u32 m0, s46, {(28 * m + j) * 1024}")
        a(f"s_add_u32 s47, s45, {(224 * m + rowbase) * 1024}")
        a(f"buffer_load_dwordx4 v{vreg}, s[12:15], s47 offen lds")
    for i in range(35):
        p4_w_dma(i)
    a("s_waitcnt vmcnt(14)")
    bar(a, "L3")
    a("s_waitcnt vmcnt(0)")
    bar(a, "S3")
    flag_store(a, label, 3, 89)
    a("s_cmp_eq_u32 s26, 4")
    a(f"s_cbranch_scc1 L_{label}_nolate")
    for i in range(28):
        m, j = i // 7, i % 7
        rowbase = 4 * j if j < 4 else (32 + 4 * (j - 4) if j < 6 else 48)
        par = (j + m + 1) % 2
        vreg = (32 if j < 4 else (34 if j < 6 else 36)) + par
        pos = (140 + 21 * m + j - 7) * 1024
        if m == 0:
            a(f"s_add_u32 s48, s46, {pos}\ns_sub_u32 s49, s48, 163840\ns_min_u32 m0, s48, s49")
        else:
            a(f"s_add_u32 m0, s46, {pos - 163840}")
        a(f"s_add_u32 s47, s45, {(56 * (20 + 3 * m - 1) + rowbase) * 1024}")
        a(f"buffer_load_dwordx4 v{vreg}, s[12:15], s47 offen lds")
    a.label(f"L_{label}_nolate")
    a("s_lshr_b32 s89, s92, 2")
    a("s_lshl_b32 s89, s89, 5")
    flag_poll(a, label, 3, 89, 32)
    bar(a, "F3")
    a("s_waitcnt vmcnt(0)")
    bar(a, "M4")
    bar(a, "Q4")
    bar(a, "R4")
    a("s_endpgm")


def tr_addr_perm(a):
    a("v_bfe_u32 v8, v4, 2, 2")
    a("v_lshl_add_u32 v9, v5, 2, v8")
    a("v_lshlrev_b32 v9, 7, v9")
    a("v_and_b32 v10, 3, v4")
    a("v_lshrrev_b32 v8, 1, v8")
    a("v_and_b32 v11, 1, v5")
    a("v_lshl_add_u32 v8, v11, 1, v8")
    a("v_lshl_add_u32 v12, v10, 3, v9")


def c_phase1(a, label, bar):
    NSLOT = P1_NSLOT
    TA0, HA, WA = 20, 22, 26
    WB, WC, TB0, TC0 = 240, 246, 252, 254
    a("s_lshl_b32 s35, s26, 12")
    a(f"s_add_u32 s35, s35, {P1_RING}")
    a("v_and_b32 v7, 7, v6")
    a("v_xor_b32 v7, v7, v5")
    a("v_lshlrev_b32 v8, 7, v6")
    a("v_lshl_add_u32 v8, v7, 4, v8")
    a(f"v_add_u32 v{TA0}, s35, v8")
    a(f"v_xor_b32 v{TA0+1}, 64, v{TA0}")
    for c1 in range(2):
        for h in range(2):
            a(f"v_add_u32 v7, {8*c1 + 4*h}, v5")
            a("v_xor_b32 v7, v7, v6")
            a("v_lshlrev_b32 v8, 10, v6")
            a("v_lshl_add_u32 v8, v7, 4, v8")
            a(f"v_add_u32 v{HA + 2*c1 + h}, {P1_H}, v8")
    a("v_bfe_u32 v7, v4, 2, 2")
    a("v_lshl_add_u32 v7, v5, 3, v7")
    a("v_mul_u32_u24 v7, 192, v7")
    a("v_and_b32 v8, 3, v4")
    a("v_lshl_add_u32 v7, v8, 3, v7")
    a("v_and_b32 v8, 1, v5")
    for b in range(6):
        a(f"v_add_u32 v12, {b}, v8")
        if b == 5:
            a("v_mul_u32_u24 v13, 6, v8")
            a("v_sub_u32 v12, v12, v13")
        a(f"v_lshl_add_u32 v{WA+b}, v12, 5, v7")
        a(f"v_add_u32 v{WA+b}, {P1_RING + 16384}, v{WA+b}")
        a(f"v_add_u32 v{WB+b}, {2 * P1_SLOT}, v{WA+b}")
        a(f"v_add_u32 v{WC+b}, {4 * P1_SLOT}, v{WA+b}")
    for h in range(2):
        a(f"v_add_u32 v{TB0+h}, {2 * P1_SLOT}, v{TA0+h}")
        a(f"v_add_u32 v{TC0+h}, {4 * P1_SLOT}, v{TA0+h}")
    ACC, RS, SQ, HX, ONES, FW, FT = 32, 80, 88, 96, 104, 108, 156
    MC, MP, MP0 = 228, 232, 236
    for i in range(ACC, ONES):
        a(f"v_mov_b32 v{i}, 0")
    for i in range(4):
        a(f"v_mov_b32 v{ONES+i}, 0x3f803f80")
    a("v_cmp_eq_u32 s[56:57], 0, v6")
    a("v_and_b32 v7, 3, v6")
    a("v_cmp_eq_u32 s[58:59], 1, v7")
    a("v_cmp_eq_u32 s[60:61], 2, v7")
    a("v_cmp_eq_u32 s[62:63], 3, v7")
    a("v_lshrrev_b32 v8, 2, v6")
    a("v_cmp_eq_u32 s[84:85], v8, v5")
    a("v_lshlrev_b32 v14, 2, v5")
    a("v_sub_u32 v14, v6, v14")
    a("v_mov_b32 v15, 0xff800000")
    for r in range(4):
        a(f"v_subrev_u32 v16, {r}, v14")
        a("v_and_b32 v17, 0x80000001, v16")
        a("v_cmp_eq_u32 vcc, 0, v17")
        a(f"v_cndmask_b32 v{MC+r}, v15, 0, vcc")
        a("v_add_u32 v16, 1, v16")
        a("v_and_b32 v17, 0x80000001, v16")
        a("v_xor_b32 v17, 0x80000001, v17")
        a("v_cmp_eq_u32 vcc, 0, v17")
        a(f"v_cndmask_b32 v{MP+r}, v15, 0, vcc")
    a("s_cmp_eq_u32 s29, 0")
    a("s_cselect_b32 s86, 0xff800000, 0")
    for r in range(4):
        a(f"v_add_f32 v{MP0+r}, s86, v{MP+r}")
    a(f"s_mov_b32 s87, {f2h(0.25 * 1.4426950408889634)}")
    a(f"v_mov_b32 v18, {LFLAG}")
    a("v_mov_b32 v19, 1")
    a("s_waitcnt lgkmcnt(0)")
    srd(a, 4, 82, WS_SIZE)
    srd(a, 8, 64, 2048 * 1024)
    bar(a, "Z")
    for w in range(1, 4):
        a(f"s_cmp_eq_u32 s26, {w}")
        a(f"s_cbranch_scc1 L_{label}_w{w}")
    seq0 = list(bar.seq)
    for w in range(4):
        if w:
            a.label(f"L_{label}_w{w}")
        bar.seq[:] = seq0

        def reads(s):
            c, h = s // 2, s % 2
            fw = FW + 24 * (s % 2); ft = FT + 12 * (s % 2)
            slot = c % NSLOT
            ta = (TA0, TB0, TC0)[slot // 2]; wa = (WA, WB, WC)[slot // 2]
            so = (slot % 2) * P1_SLOT
            out = []
            for t in range(2):
                out.append(f"ds_read_b128 v[{ft+4*t}:{ft+4*t+3}], v{ta + h} offset:{so + t * 2048}")
            for b in range(6):
                for h2 in range(2):
                    out.append(f"ds_read_b64_tr_b16 v[{fw+4*b+2*h2}:{fw+4*b+2*h2+1}], v{wa+b} offset:{so + h * 6144 + h2 * 768}")
            out.append(f"ds_read_b128 v[{ft+8}:{ft+11}], v{HA + 2*(c % 2) + h} offset:{(c // 2) * 256}")
            return out

        def wait_landed(c, first):
            L = f"L_{label}_cl{w}_{c}"
            if not first:
                a("v_readfirstlane_b32 s40, v17")
                a("s_cmp_ge_u32 s40, 4")
                a.raw(f"    s_cbranch_scc1 {L}x")
            a.raw(f"{L}:")
            a(f"ds_read_b32 v17, v18 offset:{4*c}")
            a("s_waitcnt lgkmcnt(0)")
            a("v_readfirstlane_b32 s40, v17")
            a("s_cmp_lt_u32 s40, 4")
            a.raw(f"    s_cbranch_scc1 {L}")
            a.raw(f"{L}x:")

        wait_landed(0, True)
        if w == 0:
            stamp(a, "p1 first data")
        for x in reads(0):
            a(x)
        for s in range(16):
            c, h = s // 2, s % 2
            fw = FW + 24 * (s % 2); ft = FT + 12 * (s % 2)
            a("s_waitcnt lgkmcnt(0)")
            W = lambda b: f"v[{fw+4*b}:{fw+4*b+3}]"
            T = lambda t: f"v[{ft+4*t}:{ft+4*t+3}]"
            mf = lambda acc, A, B: f"v_mfma_f32_16x16x32_bf16 v[{acc}:{acc+3}], {A}, {B}, v[{acc}:{acc+3}]"
            M = []
            for t in range(2):
                for b in range(4):
                    M.append(mf(ACC + (b * 2 + t) * 4, W(b), T(t)))
                for b in range(4, 6):
                    M.append(mf(ACC + (b * 2 + t) * 4, T(t), W(b)))
                M.append(mf(RS + 4 * t, f"v[{ONES}:{ONES+3}]", T(t)))
                M.append(mf(SQ + 4 * t, T(t), T(t)))
            if w < 2:
                M += [mf(HX, W(2 + w), T(2)), mf(HX + 4, W(w), T(2))]
            elif w == 2:
                M += [mf(HX, T(2), W(4)), mf(HX + 4, T(2), W(5))]
            else:
                M += [mf(HX, f"v[{ONES}:{ONES+3}]", T(2)), mf(HX + 4, T(2), T(2))]
            a(M[0]); a(M[1])
            if s + 1 < 16:
                if h == 1:
                    if c < 3 or c == 4:
                        a("s_mov_b64 exec, 1")
                        a(f"ds_add_u32 v18, v19 offset:{32 + 4*c}")
                        a("s_mov_b64 exec, -1")
                    wait_landed(c + 1, False)
                    if w == 0 and "chunkts" in EXP: stamp(a, f"c{c+1}")
            R = reads(s + 1) if s + 1 < 16 else []
            if h == 0 and c + 1 < 8:
                R = R + [f"ds_read_b32 v17, v18 offset:{4*(c+1)}"]
            side = [(i * 2 // 3, x) for i, x in enumerate(R)]
            side += [(10 + i, f"v_cndmask_b32 v{ft+8+i}, v{ft+8+i}, v{ONES}, s[56:57]") for i in range(4)]
            interleave(a, M[2:], side)
        if w == 0:
            stamp(a, "p1 loop done")
        PV = lambda ww: P1_EX + ww * 3072
        a.label(f"L_{label}_cx{w}")
        a(f"ds_read_b32 v17, v18 offset:{32 + 16}")
        a("s_waitcnt lgkmcnt(0)")
        a("v_readfirstlane_b32 s40, v17")
        a("s_cmp_lt_u32 s40, 4")
        a(f"s_cbranch_scc1 L_{label}_cx{w}")
        a("v_lshlrev_b32 v9, 3, v6")
        a(f"v_add_u32 v9, {PV(w)}, v9")

        def stats(rs, sq, off):
            a(f"v_cndmask_b32 v10, v{sq}, v{sq+1}, s[58:59]")
            a(f"v_cndmask_b32 v10, v10, v{sq+2}, s[60:61]")
            a(f"v_cndmask_b32 v10, v10, v{sq+3}, s[62:63]")
            a(f"v_mul_f32 v11, {1.0/512!r}, v{rs}")
            a(f"v_mul_f32 v10, {1.0/512!r}, v10")
            a("v_fma_f32 v10, -v11, v11, v10")
            a("v_max_f32 v10, 0, v10")
            a("v_add_f32 v10, 0x3727c5ac, v10")
            a("v_rsq_f32 v12, v10")
            a("v_mul_f32 v13, v11, v12")
            a("v_sub_f32 v13, 0, v13")
            a("s_mov_b64 exec, s[84:85]")
            a(f"ds_write_b64 v9, v[12:13] offset:{off}")
            a("s_mov_b64 exec, -1")
        a(f"v_add_u32 v14, {P1_EX}, v1")
        stats(RS, SQ, 0)
        for i, b in enumerate((2, 3, 4, 5)):
            acc = ACC + (b * 2 + 1) * 4
            a(f"ds_write_b128 v14, v[{acc}:{acc+3}] offset:{12288 + w*4096 + i*1024}")
        stats(RS + 4, SQ + 4, 128)
        if w == 3:
            stats(HX, HX + 4, 256)
        if w < 3:
            a(f"ds_write_b128 v14, v[{HX}:{HX+3}] offset:{w*3072 + 1024}")
            if w == 2:
                a(f"ds_write_b128 v14, v[{HX+4}:{HX+7}] offset:{w*3072 + 2048}")
        if w < 2:
            a("v_lshlrev_b32 v11, 4, v5")
            a(f"v_add_u32 v11, {PV(w)}, v11")
            a("s_mov_b64 exec, s[56:57]")
            a(f"ds_write_b128 v11, v[{HX}:{HX+3}] offset:512")
            a(f"ds_write_b128 v11, v[{HX+4}:{HX+7}] offset:576")
            a("s_mov_b64 exec, -1")
        elif w == 2:
            a("v_lshlrev_b32 v11, 2, v6")
            a(f"v_add_u32 v11, {PV(w)}, v11")
            a("s_mov_b64 exec, 0xffff")
            a(f"ds_write_b32 v11, v{HX} offset:512")
            a(f"ds_write_b32 v11, v{HX+4} offset:576")
            a("s_mov_b64 exec, -1")
        SA, SV, CQ, CV, PR = 108, 116, 140, 156, 160
        a("v_lshlrev_b32 v9, 3, v6")
        a("v_lshlrev_b32 v10, 5, v5")
        a("v_lshlrev_b32 v11, 4, v5")
        a("v_lshlrev_b32 v12, 2, v6")
        for r in (9, 10, 11, 12):
            a(f"v_add_u32 v{r}, {P1_EX}, v{r}")
        a("s_waitcnt lgkmcnt(0)")
        bar(a, "A1")
        rel = lambda ww: ww * 3072
        prev_st = rel(3) + 256 if w == 0 else rel(w - 1) + 128
        for i, off in ((1, rel(w)), (0, prev_st), (2, rel(w) + 128)):
            a(f"ds_read_b64 v[{SA+2*i}:{SA+2*i+1}], v9 offset:{off}")
            if i == 1:
                for hd in range(2):
                    a(f"ds_read_b128 v[{CQ+4*hd}:{CQ+4*hd+3}], v11 offset:{rel(hd) + 576}")
                    a(f"ds_read_b128 v[{CQ+8+4*hd}:{CQ+8+4*hd+3}], v11 offset:{rel(hd) + 512}")
                    a(f"ds_read_b32 v{CV+hd}, v12 offset:{rel(2) + 512 + 64*hd}")
            a(f"ds_read_b128 v[{SV+8*i}:{SV+8*i+3}], v10 offset:{off}")
            a(f"ds_read_b128 v[{SV+8*i+4}:{SV+8*i+7}], v10 offset:{off+16}")
        if w == 0:
            srcs = (rel(0) + 1024, rel(1) + 1024, rel(2) + 1024, rel(2) + 2048)
        else:
            srcs = tuple(12288 + (w - 1) * 4096 + i * 1024 for i in range(4))
        for i, off in enumerate(srcs):
            a(f"ds_read_b128 v[{PR+4*i}:{PR+4*i+3}], v14 offset:{off}")
        e = a
        PKB = 188
        pk = lambda b, tb: PKB + (b * 3 + tb) * 2
        src = lambda b, tb: PR + 4 * (b - 2) if tb == 0 else ACC + (b * 2 + tb - 1) * 4
        n = 0
        a("s_waitcnt lgkmcnt(10)")
        for tb in (1, 2, 0):
            if tb == 2:
                a("s_waitcnt lgkmcnt(0)")
            for b in range(6):
                if tb == 0 and b < 2:
                    continue
                r0 = src(b, tb)
                for r in range(4):
                    tmp = 16 + (n % 4); n += 1
                    if b < 4:
                        e(f"v_mul_f32 v{tmp}, v{CQ+4*b+r}, v{SA+2*tb+1}")
                        e(f"v_fmac_f32 v{tmp}, v{r0+r}, v{SA+2*tb}")
                    else:
                        e(f"v_mul_f32 v{tmp}, v{CV+b-4}, v{SV+8*tb+2*r+1}")
                        e(f"v_fmac_f32 v{tmp}, v{r0+r}, v{SV+8*tb+2*r}")
                e(f"v_cvt_pk_bf16_f32 v{pk(b,tb)}, v16, v17")
                e(f"v_cvt_pk_bf16_f32 v{pk(b,tb)+1}, v18, v19")
        SB_, OB_, PB_, OUT = 32, 64, 80, 96
        units = [(t, hd) for t in range(2) for hd in range(2)]
        P2 = lambda r: f"v[{r}:{r+1}]"
        for u, (t, hd) in enumerate(units):
            e(f"v_mfma_f32_16x16x16_bf16 v[{SB_+8*u}:{SB_+8*u+3}], {P2(pk(2+hd, t))}, {P2(pk(hd, t+1))}, 0")
            e(f"v_mfma_f32_16x16x16_bf16 v[{SB_+8*u+4}:{SB_+8*u+7}], {P2(pk(2+hd, t+1))}, {P2(pk(hd, t+1))}, 0")
        MX, SM, TC = 108, 112, 116
        for u, (t, hd) in enumerate(units):
            mp = MP0 if (w == 0 and t == 0) else MP
            for r in range(4):
                e(f"v_fma_f32 v{SB_+8*u+r}, v{SB_+8*u+r}, s87, v{mp+r}")
                e(f"v_fma_f32 v{SB_+8*u+4+r}, v{SB_+8*u+4+r}, s87, v{MC+r}")
            S = lambda i: f"v{SB_+8*u+i}"
            e(f"v_max3_f32 v{MX+u}, {S(0)}, {S(1)}, {S(2)}")
            e(f"v_max3_f32 v{MX+u}, v{MX+u}, {S(3)}, {S(4)}")
            e(f"v_max3_f32 v{MX+u}, v{MX+u}, {S(5)}, {S(6)}")
            e(f"v_max_f32 v{MX+u}, v{MX+u}, {S(7)}")
        for sw in ("v_permlane32_swap_b32", "v_permlane16_swap_b32"):
            for u in range(4):
                e(f"v_mov_b32 v{TC+u}, v{MX+u}")
            for u in range(4):
                e(f"{sw} v{MX+u}, v{TC+u}")
            for u in range(4):
                e(f"v_max_f32 v{MX+u}, v{MX+u}, v{TC+u}")
        for u in range(4):
            for i in range(8):
                e(f"v_sub_f32 v{SB_+8*u+i}, v{SB_+8*u+i}, v{MX+u}")
            for i in range(8):
                e(f"v_exp_f32 v{SB_+8*u+i}, v{SB_+8*u+i}")
        for u in range(4):
            e(f"v_add_f32 v{SM+u}, v{SB_+8*u}, v{SB_+8*u+1}")
            for i in range(2, 8):
                e(f"v_add_f32 v{SM+u}, v{SM+u}, v{SB_+8*u+i}")
        for sw in ("v_permlane32_swap_b32", "v_permlane16_swap_b32"):
            for u in range(4):
                e(f"v_mov_b32 v{TC+u}, v{SM+u}")
            for u in range(4):
                e(f"{sw} v{SM+u}, v{TC+u}")
            for u in range(4):
                e(f"v_add_f32 v{SM+u}, v{SM+u}, v{TC+u}")
        for u in range(4):
            e(f"v_rcp_f32 v{SM+u}, v{SM+u}")
        for u in range(4):
            for i in range(8):
                e(f"v_mul_f32 v{SB_+8*u+i}, v{SB_+8*u+i}, v{SM+u}")
            for i in range(4):
                e(f"v_cvt_pk_bf16_f32 v{PB_+4*u+i}, v{SB_+8*u+2*i}, v{SB_+8*u+2*i+1}")
        for u, (t, hd) in enumerate(units):
            e(f"v_mfma_f32_16x16x16_bf16 v[{OB_+4*u}:{OB_+4*u+3}], {P2(pk(4+hd, t))}, {P2(PB_+4*u)}, 0")
        for u, (t, hd) in enumerate(units):
            e(f"v_mfma_f32_16x16x16_bf16 v[{OB_+4*u}:{OB_+4*u+3}], {P2(pk(4+hd, t+1))}, {P2(PB_+4*u+2)}, v[{OB_+4*u}:{OB_+4*u+3}]")
        a("s_lshl_b32 s38, s29, 17")
        a("s_lshl_b32 s39, s43, 10")
        a("s_add_u32 s38, s38, s39")
        a(f"s_add_u32 s38, s38, {WS_O + 2 * w * 16384}")
        a("s_add_u32 s39, s38, 16384")
        for u, (t, hd) in enumerate(units):
            a(f"v_cvt_pk_bf16_f32 v{OUT+4*t+2*hd}, v{OB_+4*u}, v{OB_+4*u+1}")
            a(f"v_cvt_pk_bf16_f32 v{OUT+4*t+2*hd+1}, v{OB_+4*u+2}, v{OB_+4*u+3}")
        for t in range(2):
            a(f"buffer_store_dwordx4 v[{OUT+4*t}:{OUT+4*t+3}], v1, s[4:7], s{38+t} offen{SC1}")
        if w < 3:
            a(f"s_branch L_{label}_p1join")
    a.label(f"L_{label}_p1join")
    stamp(a, "p1 stored")


def gemm22_setup(a):
    a("s_and_b32 s30, s26, 1")
    a("s_lshr_b32 s31, s26, 1")
    a("s_lshl_b32 s29, s92, 2")
    a("s_lshl_b32 s32, s30, 1")
    a("s_add_u32 s29, s29, s32")
    a("s_add_u32 s33, s29, s31")
    a("s_xor_b32 s32, s31, 1")
    a("s_add_u32 s34, s29, s32")
    a("s_mov_b32 s29, s33")


def gemm22_reduce(a, bar, name, ACC, red_base):
    a("s_xor_b32 s36, s26, 2")
    a("s_lshl_b32 s36, s36, 12")
    a(f"s_add_u32 s36, s36, {red_base}")
    a("v_add_u32 v14, s36, v1")
    a("s_lshl_b32 s36, s26, 12")
    a(f"s_add_u32 s36, s36, {red_base}")
    a("v_add_u32 v15, s36, v1")
    for b in range(4):
        a(f"ds_write_b128 v14, v[{ACC+16+4*b}:{ACC+16+4*b+3}] offset:{b*1024}")
    a("s_waitcnt lgkmcnt(0)")
    bar(a, name)
    for b in range(4):
        a(f"ds_read_b128 v[{ACC+16+4*b}:{ACC+16+4*b+3}], v15 offset:{b*1024}")


P3_AD_ = 7


def c_phase2(a, label, bar):
    FR, TK, ACC, RB = 112, 48, 16, 240
    gemm22_setup(a)
    tr_addr_perm(a)
    a("s_lshl_b32 s36, s31, 12")
    a("v_add_u32 v12, s36, v12")
    for b in range(4):
        a(f"v_xor_b32 v11, {b}, v8")
        a(f"v_lshl_add_u32 v{248+b}, v11, 5, v12")
    bar(a, "L1")
    for i in range(8):
        for b in range(4):
            for h in range(2):
                r = FR + i * 16 + b * 4 + 2 * h
                a(f"ds_read_b64_tr_b16 v[{r}:{r+1}], v{248+b} offset:{P2_W + i*8192 + h*2048}")
    for i in range(32):
        a(f"v_mov_b32 v{ACC+i}, 0")
    a("v_lshlrev_b32 v7, 10, v6")
    a("v_lshl_add_u32 v7, v5, 3, v7")
    a("s_lshl_b32 s32, s29, 14")
    a("s_lshl_b32 s35, s93, 7")
    a("s_add_u32 s32, s32, s35")
    a("s_lshl_b32 s37, s31, 10")
    a("s_lshl_b32 s33, s33, 14")
    a("s_lshl_b32 s34, s34, 14")
    a(f"s_add_u32 s35, s33, {WS_H}")
    a("s_lshl_b32 s36, s93, 11")
    a("s_add_u32 s35, s35, s36")
    a("s_add_u32 s33, s33, s37")
    a("s_add_u32 s34, s34, s37")
    a("s_waitcnt vmcnt(0) lgkmcnt(0)")
    stamp(a, "p1 drained")
    bar(a, "S1")
    for b in range(4):
        a(f"buffer_load_dwordx2 v[{RB+2*b}:{RB+2*b+1}], v7, s[8:11], s32 offen offset:{b*32}")
    a(f"v_mov_b32 v14, {LFLAG}")
    wait_lds(a, f"L_{label}_cf1", 14, 15, 64 + 4)
    stamp(a, "p2 flags ok")
    for i in range(8):
        for t in range(2):
            if i % 2 == 0 and i:
                a(f"s_add_u32 s{33+t}, s{33+t}, 4096")
            a(f"buffer_load_dwordx4 v[{TK+8*i+4*t}:{TK+8*i+4*t+3}], v1, s[4:7], s{33+t} offen offset:{(i % 2) * 2048}{SC1}")
    for i in range(8):
        a(f"s_waitcnt vmcnt({2 * (7 - i)})")
        if i == 0:
            stamp(a, "p2 first data")
        for t in (1, 0):
            for b in range(4):
                acc = ACC + 16 * t + 4 * b
                a(f"v_mfma_f32_16x16x32_bf16 v[{acc}:{acc+3}], v[{FR+i*16+4*b}:{FR+i*16+4*b+3}], v[{TK+8*i+4*t}:{TK+8*i+4*t+3}], v[{acc}:{acc+3}]")
    gemm22_reduce(a, bar, "R2", ACC, P2_RED)
    TMP = 48
    for b in range(4):
        for r in range(4):
            d = RB + 2 * b + r // 2
            if r % 2 == 0:
                a(f"v_lshlrev_b32 v{TMP+(b*4+r)}, 16, v{d}")
            else:
                a(f"v_and_b32 v{TMP+(b*4+r)}, 0xffff0000, v{d}")
    for i in range(8):
        a(f"v_pk_add_f32 v[{ACC+2*i}:{ACC+2*i+1}], v[{ACC+2*i}:{ACC+2*i+1}], v[{TMP+2*i}:{TMP+2*i+1}]")
    a("s_waitcnt lgkmcnt(0)")
    for i in range(8):
        a(f"v_pk_add_f32 v[{ACC+2*i}:{ACC+2*i+1}], v[{ACC+2*i}:{ACC+2*i+1}], v[{ACC+16+2*i}:{ACC+16+2*i+1}]")
    OB = 64
    for i in range(8):
        a(f"v_cvt_pk_bf16_f32 v{OB+i}, v{ACC+2*i}, v{ACC+2*i+1}")
    for hh in range(2):
        a(f"buffer_store_dwordx4 v[{OB+4*hh}:{OB+4*hh+3}], v1, s[4:7], s35 offen offset:{hh*1024}{SC1}")
    for d in range(8):
        a(f"v_lshlrev_b32 v{TMP+2*d}, 16, v{OB+d}")
        a(f"v_and_b32 v{TMP+2*d+1}, 0xffff0000, v{OB+d}")
    S0 = OB + 8; S1 = S0 + 1
    a(f"v_add_f32 v{S0}, v{TMP}, v{TMP+1}")
    a(f"v_mul_f32 v{S1}, v{TMP}, v{TMP}")
    a(f"v_fmac_f32 v{S1}, v{TMP+1}, v{TMP+1}")
    for i in range(2, 16):
        a(f"v_add_f32 v{S0}, v{S0}, v{TMP+i}")
        a(f"v_fmac_f32 v{S1}, v{TMP+i}, v{TMP+i}")
    C0, C1 = S0 + 2, S0 + 3
    for sw in ("v_permlane32_swap_b32", "v_permlane16_swap_b32"):
        a(f"v_mov_b32 v{C0}, v{S0}")
        a(f"v_mov_b32 v{C1}, v{S1}")
        a(f"{sw} v{S0}, v{C0}")
        a(f"{sw} v{S1}, v{C1}")
        a(f"v_add_f32 v{S0}, v{S0}, v{C0}")
        a(f"v_add_f32 v{S1}, v{S1}, v{C1}")
    a("v_lshlrev_b32 v14, 3, v6")
    a("s_lshl_b32 s39, s29, 10")
    a("s_lshl_b32 s40, s93, 7")
    a("s_add_u32 s39, s39, s40")
    a(f"s_add_u32 s39, s39, {WS_STATS}")
    a("s_mov_b64 exec, 0xffff")
    a(f"buffer_store_dwordx2 v[{S0}:{S1}], v14, s[4:7], s39 offen{SC1}")
    a("s_mov_b64 exec, -1")
    stamp(a, "p2 stored")
    a("s_waitcnt vmcnt(0)")
    stamp(a, "p2 drained")
    bar(a, "S2")


def c_phase3(a, label, bar):
    NS, D = 16, 4
    AD = P3_AD_
    ACC, FB, TK, AB = 16, 128, 184, 248
    tr_addr_perm(a)
    for b in range(3):
        a(f"v_xor_b32 v11, {b}, v8")
        a(f"v_lshl_add_u32 v{243+b}, v11, 5, v12")
        a(f"v_add_u32 v{240+b}, {P3_G}, v{243+b}")
    a("v_xor_b32 v11, 3, v8")
    a("v_lshl_add_u32 v12, v11, 5, v9")
    a("v_and_b32 v11, 1, v10")
    a("v_lshl_add_u32 v12, v11, 3, v12")
    a("v_lshrrev_b32 v11, 1, v10")
    a("v_xor_b32 v11, 1, v11")
    a(f"v_mul_u32_u24 v11, {P3_G}, v11")
    a("v_add_u32 v246, v11, v12")
    for b in range(7):
        a(f"v_mov_b32 v{AD+b}, v{240+b}")
    a(f"v_mov_b32 v14, v{AD}")
    a(f"v_mov_b32 v15, v{AD+4}")
    for w in range(1, 4):
        a(f"s_cmp_eq_u32 s26, {w}")
        a("s_cselect_b64 vcc, -1, 0")
        a(f"v_cndmask_b32 v14, v14, v{AD+w}, vcc")
        a(f"v_cndmask_b32 v15, v15, v{AD+min(w+4,6)}, vcc")
    CF, CA, ONES = 112, 16, 24
    for s in range(16):
        for q in range(2):
            for h in range(2):
                r = CF + s * 8 + q * 4 + 2 * h
                a(f"ds_read_b64_tr_b16 v[{r}:{r+1}], v{14+q} offset:{s*4096 + h*2048}")
    for i in range(8):
        a(f"v_mov_b32 v{CA+i}, 0")
    for i in range(4):
        a(f"v_mov_b32 v{ONES+i}, 0x3f803f80")
    a("s_waitcnt lgkmcnt(0)")
    for s in range(16):
        for q in range(2):
            a(f"v_mfma_f32_16x16x32_bf16 v[{CA+4*q}:{CA+4*q+3}], v[{CF+s*8+4*q}:{CF+s*8+4*q+3}], v[{ONES}:{ONES+3}], v[{CA+4*q}:{CA+4*q+3}]")
    a("s_lshl_b32 s35, s26, 6")
    a(f"s_add_u32 s35, s35, {P3_CS}")
    a("v_lshlrev_b32 v14, 4, v5")
    a("v_add_u32 v15, s35, v14")
    a(f"v_add_u32 v14, {P3_CS}, v14")
    a("s_mov_b32 exec_lo, 0x00010001")
    a("s_mov_b32 exec_hi, 0x00010001")
    a(f"ds_write_b128 v15, v[{CA}:{CA+3}]")
    a(f"ds_write_b128 v15, v[{CA+4}:{CA+7}] offset:256")
    a("s_mov_b64 exec, -1")

    def reads(s):
        fb = FB + 28 * (s % 2)
        return [f"ds_read_b64_tr_b16 v[{fb+4*b+2*h}:{fb+4*b+2*h+1}], v{AD+b} offset:{s*4096 + h*2048}"
                for b in range(7) for h in range(2)]
    for x in reads(0):
        a(x)
    a("s_lshl_b32 s29, s94, 18")
    a("s_lshl_b32 s30, s26, 16")
    a("s_add_u32 s29, s29, s30")
    a(f"s_add_u32 s30, s29, {WS_H}")
    a("v_lshlrev_b32 v15, 3, v6")
    a("v_lshl_add_u32 v15, v5, 7, v15")
    a("s_lshl_b32 s33, s94, 14")
    a("s_lshl_b32 s34, s26, 12")
    a("s_add_u32 s33, s33, s34")
    a(f"s_add_u32 s33, s33, {WS_STATS}")
    a("s_waitcnt lgkmcnt(0)")
    stamp(a, "p3 colsum")
    a(f"v_mov_b32 v248, {LFLAG}")
    a("v_mov_b32 v249, 1")
    a("s_mov_b64 exec, 1")
    a("ds_add_u32 v248, v249 offset:96")
    a("s_mov_b64 exec, -1")
    wait_lds(a, f"L_{label}_cf2", 248, 249, 64 + 8)
    stamp(a, "p3 flags ok")
    vm = VM()

    def tok(s):
        slot = s % D
        return [f"s_add_u32 s32, s30, {t * 16384 + (s // 4) * 4096}\n"
                f"buffer_load_dwordx4 v[{TK+slot*16+4*t}:{TK+slot*16+4*t+3}], v1, s[4:7], s32 offen offset:{(s % 4) * 1024}{SC1}"
                for t in range(4)]
    for s in range(D):
        for x in tok(s):
            a(x); vm.add(("t", s))
    STR = TK
    for s in range(NS):
        slot = s % D
        fb = FB + 28 * (s % 2)
        a("s_waitcnt lgkmcnt(0)")
        vm.wait_for(a, lambda t: t[0] == "t" and t[1] <= s)
        if s == 0:
            stamp(a, "p3 first data")
        if s == 15:
            wait_lds(a, f"L_{label}_ccs", 248, 249, 96, 4)
        M = []
        for t in range(4):
            for b in range(7):
                acc = ACC + (b * 4 + t) * 4
                csrc = "0" if s == 0 else f"v[{acc}:{acc+3}]"
                M.append(f"v_mfma_f32_16x16x32_bf16 v[{acc}:{acc+3}], v[{fb+4*b}:{fb+4*b+3}], v[{TK+slot*16+4*t}:{TK+slot*16+4*t+3}], {csrc}")
        R = reads(s + 1) if s + 1 < NS else []
        side = [(i, x) for i, x in enumerate(R)]
        if s + D < NS:
            side += [(7 * t + 6, x) for t, x in enumerate(tok(s + D))]
            for _ in range(4):
                vm.add(("t", s + D))
        if s == 12:
            for t in range(4):
                for q in range(2):
                    side.append((7 * t + 6, f"buffer_load_dwordx2 v[{STR+4*t+2*q}:{STR+4*t+2*q+1}], v15, s[4:7], s33 offen offset:{t*1024 + q*512}{SC1}"))
                    vm.add(("st", 0))
        if s == 15:
            side += [(b, f"ds_read_b128 v[{FB+4*b}:{FB+4*b+3}], v14 offset:{b*64}") for b in range(7)]
            sv = ["s_waitcnt vmcnt(0)"]
            for t in range(4):
                r = STR + 4 * t
                sv += [f"v_add_f32 v{r}, v{r}, v{r+2}", f"v_add_f32 v{r+1}, v{r+1}, v{r+3}"]
            for sw in ("v_permlane32_swap_b32", "v_permlane16_swap_b32"):
                for t in range(4):
                    r = STR + 4 * t
                    sv += [f"v_mov_b32 v{r+2}, v{r}", f"v_mov_b32 v{r+3}, v{r+1}"]
                for t in range(4):
                    r = STR + 4 * t
                    sv += [f"{sw} v{r}, v{r+2}", f"{sw} v{r+1}, v{r+3}"]
                for t in range(4):
                    r = STR + 4 * t
                    sv += [f"v_add_f32 v{r}, v{r}, v{r+2}", f"v_add_f32 v{r+1}, v{r+1}, v{r+3}"]
            for t in range(4):
                r = STR + 4 * t
                sv += [f"v_mul_f32 v{r}, {-1.0/512!r}, v{r}", f"v_mul_f32 v{r+1}, {1.0/512!r}, v{r+1}",
                       f"v_fma_f32 v{r+1}, -v{r}, v{r}, v{r+1}", f"v_max_f32 v{r+1}, 0, v{r+1}",
                       f"v_add_f32 v{r+1}, 0x3727c5ac, v{r+1}", f"v_rsq_f32 v{AB+2*t}, v{r+1}",
                       f"v_mov_b32 v{r+1}, v{r}", f"v_mov_b32 v{AB+2*t+1}, v{AB+2*t}"]
            side += spread(sv, 0, 28)
        interleave(a, M, side)
    stamp(a, "p3 loop done")
    a("s_waitcnt lgkmcnt(0)")
    bar(a, "A3")
    CSR = FB
    T = 156
    KA_, KB_ = 204, 206
    cA = -2.0 * 0.7978845608028654 * 1.4426950408889634
    cB = cA * 0.044715
    e = a
    e(f"v_mov_b32 v{KA_}, {f2h(cA)}"); e(f"v_mov_b32 v{KA_+1}, {f2h(cA)}")
    e(f"v_mov_b32 v{KB_}, {f2h(cB)}"); e(f"v_mov_b32 v{KB_+1}, {f2h(cB)}")
    e("v_and_b32 v8, 1, v5")
    e("v_lshlrev_b32 v8, 8, v8")
    e("v_lshl_add_u32 v8, v6, 4, v8")
    e("v_lshrrev_b32 v9, 1, v5")
    e(f"v_mul_u32_u24 v10, {56*1024}, v9")
    e("v_add_u32 v8, v10, v8")
    e("v_and_b32 v11, 1, v5")
    e("v_lshl_add_u32 v9, v11, 1, v9")
    e(f"v_mul_u32_u24 v9, {56*1024}, v9")
    e("v_lshl_add_u32 v9, v6, 4, v9")
    e(f"s_mul_i32 s36, s94, {16 * 56 * 1024}")
    e(f"s_mul_i32 s37, s26, {4 * 56 * 1024}")
    e("s_add_u32 s36, s36, s37")
    e(f"s_mul_i32 s37, s95, {7 * 256}")
    e("s_add_u32 s36, s36, s37")
    e(f"s_add_u32 s36, s36, {WS_ACT}")

    def scale(r0, t):
        b = (r0 - ACC) // 16
        for h in range(2):
            e(f"v_pk_fma_f32 v[{r0+2*h}:{r0+2*h+1}], v[{CSR+4*b+2*h}:{CSR+4*b+2*h+1}], v[{STR+4*t}:{STR+4*t+1}], v[{r0+2*h}:{r0+2*h+1}]")
            e(f"v_pk_mul_f32 v[{r0+2*h}:{r0+2*h+1}], v[{r0+2*h}:{r0+2*h+1}], v[{AB+2*t}:{AB+2*t+1}]")

    def geglu(gr, ur, outr, tb):
        for h in range(2):
            g = f"v[{gr+2*h}:{gr+2*h+1}]"
            t1 = f"v[{tb+4*h}:{tb+4*h+1}]"
            e(f"v_pk_mul_f32 {t1}, {g}, {g}")
            e(f"v_pk_fma_f32 {t1}, {t1}, v[{KB_}:{KB_+1}], v[{KA_}:{KA_+1}]")
            e(f"v_pk_mul_f32 {t1}, {t1}, {g}")
        for h in range(2):
            for x in range(2):
                e(f"v_exp_f32 v{tb+4*h+x}, v{tb+4*h+x}")
        for h in range(2):
            e(f"v_pk_mul_f32 v[{tb+4*h+2}:{tb+4*h+3}], v[{gr+2*h}:{gr+2*h+1}], v[{ur+2*h}:{ur+2*h+1}]")
            e(f"v_pk_add_f32 v[{tb+4*h}:{tb+4*h+1}], v[{tb+4*h}:{tb+4*h+1}], 1.0 op_sel_hi:[1,0]")
        for h in range(2):
            for x in range(2):
                e(f"v_rcp_f32 v{tb+4*h+x}, v{tb+4*h+x}")
        for h in range(2):
            e(f"v_pk_mul_f32 v[{tb+4*h}:{tb+4*h+1}], v[{tb+4*h}:{tb+4*h+1}], v[{tb+4*h+2}:{tb+4*h+3}]")
        for h in range(2):
            e(f"v_cvt_pk_bf16_f32 v{outr+h}, v{tb+4*h}, v{tb+4*h+1}")

    A_ = lambda b, t: ACC + (b * 4 + t) * 4
    OA, OBB, OC = 208, 224, 232
    n = 0
    for t in range(4):
        for p in range(2):
            scale(A_(p, t), t); scale(A_(3 + p, t), t)
            geglu(A_(p, t), A_(3 + p, t), OA + 4 * t + 2 * p, T + 8 * (n % 3)); n += 1
        e(f"s_add_u32 s37, s36, {t * 56 * 1024}")
        e(f"buffer_store_dwordx4 v[{OA+4*t}:{OA+4*t+3}], v1, s[4:7], s37 offen{SC1}")
    for t in range(4):
        scale(A_(2, t), t); scale(A_(5, t), t)
        geglu(A_(2, t), A_(5, t), OBB + 4 * (t // 2) + 2 * (t % 2), T + 8 * (n % 3)); n += 1
        if t % 2 == 1:
            o = OBB + 4 * (t // 2)
            e(f"v_permlane32_swap_b32 v{o}, v{o+2}")
            e(f"v_permlane32_swap_b32 v{o+1}, v{o+3}")
            e(f"s_add_u32 s37, s36, {(t - 1) * 56 * 1024}")
            e(f"buffer_store_dwordx4 v[{o}:{o+3}], v8, s[4:7], s37 offen offset:1024{SC1}")
    for t in range(4):
        scale(A_(6, t), t)
    for t0 in (0, 2):
        for r in range(4):
            e(f"v_permlane32_swap_b32 v{A_(6, t0)+r}, v{A_(6, t0+1)+r}")
        geglu(A_(6, t0), A_(6, t0 + 1), OC + t0, T + 8 * (n % 3)); n += 1
    e(f"v_permlane16_swap_b32 v{OC}, v{OC+2}")
    e(f"v_permlane16_swap_b32 v{OC+1}, v{OC+3}")
    e(f"buffer_store_dwordx4 v[{OC}:{OC+3}], v9, s[4:7], s36 offen offset:1536{SC1}")
    stamp(a, "p3 stored")


def c_phase4(a, label, bar):
    NI, D = 28, 7
    ACC, FR, TK, AD, RB = 16, 48, 176, 236, 248
    gemm22_setup(a)
    a("v_bfe_u32 v12, v4, 2, 2")
    a("v_lshl_add_u32 v13, v5, 3, v12")
    a("v_lshlrev_b32 v13, 7, v13")
    a("v_and_b32 v14, 3, v4")
    a("v_lshl_add_u32 v13, v14, 3, v13")
    a("s_lshl_b32 s36, s31, 12")
    a("v_add_u32 v13, s36, v13")
    a("v_lshrrev_b32 v12, 1, v12")
    a("v_and_b32 v14, 1, v5")
    a("v_lshl_add_u32 v12, v14, 1, v12")
    for b in range(4):
        a(f"v_xor_b32 v14, {b}, v12")
        a(f"v_lshl_add_u32 v{AD+b}, v14, 5, v13")
        a(f"v_add_u32 v{AD+4+b}, 65536, v{AD+b}")
        a(f"v_add_u32 v{AD+8+b}, 131072, v{AD+b}")

    def rd(i):
        pos = (i % 20) * 8192
        base = AD + 4 * (pos // 65536)
        off = pos % 65536
        dst = FR + (i % 8) * 16
        return [f"ds_read_b64_tr_b16 v[{dst+4*b+2*h}:{dst+4*b+2*h+1}], v{base+b} offset:{off + h*512}"
                for b in range(4) for h in range(2)]
    bar(a, "L3")
    for i in range(8):
        for x in rd(i):
            a(x)
    a("s_waitcnt vmcnt(0)")
    stamp(a, "p3 drained")
    for i in range(32):
        a(f"v_mov_b32 v{ACC+i}, 0")
    srd(a, 20, 78, 2048 * 1024)
    a("v_lshlrev_b32 v7, 10, v6")
    a("v_lshl_add_u32 v7, v5, 3, v7")
    a("s_lshl_b32 s32, s29, 14")
    a("s_lshl_b32 s35, s93, 7")
    a("s_add_u32 s32, s32, s35")
    a("s_lshl_b32 s35, s29, 14")
    a("s_lshl_b32 s36, s93, 11")
    a("s_add_u32 s35, s35, s36")
    a(f"s_add_u32 s35, s35, {WS_H}")
    a("s_lshl_b32 s37, s31, 10")
    a(f"s_add_u32 s37, s37, {WS_ACT}")
    a(f"s_mul_i32 s33, s33, {56 * 1024}")
    a(f"s_mul_i32 s34, s34, {56 * 1024}")
    a("s_add_u32 s33, s33, s37")
    a("s_add_u32 s34, s34, s37")
    a("s_waitcnt lgkmcnt(0)")
    bar(a, "S3")
    for hh in range(2):
        a(f"buffer_load_dwordx4 v[{RB+4*hh}:{RB+4*hh+3}], v1, s[4:7], s35 offen offset:{hh*1024}{SC1}")
    bar(a, "F3")
    stamp(a, "p4 flags ok")
    vm = VM()

    def tok(i):
        out = []
        for t in range(2):
            r = TK + 8 * (i % D) + 4 * t
            pre = f"s_add_u32 s{33+t}, s{33+t}, 4096\n" if (i % 2 == 0 and i) else ""
            out.append(pre + f"buffer_load_dwordx4 v[{r}:{r+3}], v1, s[4:7], s{33+t} offen offset:{(i % 2) * 2048}{SC1}")
        return out
    for i in range(D):
        for x in tok(i):
            a(x); vm.add(i)
    for i in range(NI):
        if i >= 8:
            a("s_waitcnt lgkmcnt(8)" if i + 8 <= NI else "s_waitcnt lgkmcnt(0)")
        vm.wait_for(a, lambda t: t <= i)
        if i == 0:
            stamp(a, "p4 first data")
        if i == 8:
            bar(a, "M4")
        M = []
        for b in range(4):
            for t in range(2):
                acc = ACC + 16 * t + 4 * b
                fr = FR + (i % 8) * 16 + 4 * b
                r = TK + 8 * (i % D) + 4 * t
                M.append(f"v_mfma_f32_16x16x32_bf16 v[{acc}:{acc+3}], v[{fr}:{fr+3}], v[{r}:{r+3}], v[{acc}:{acc+3}]")
        side = []
        if i + 8 < NI:
            side += [(2 * (k // 2) + 1, x) for k, x in enumerate(rd(i + 8))]
        if i + D < NI:
            side += [(7, x) for x in tok(i + D)]
            vm.add(i + D); vm.add(i + D)
        interleave(a, M, side)
    stamp(a, "p4 loop done")
    bar(a, "Q4")
    gemm22_reduce(a, bar, "R4", ACC, 0)
    TMP = 48
    for b in range(4):
        for r in range(4):
            d = RB + 2 * b + r // 2
            if r % 2 == 0:
                a(f"v_lshlrev_b32 v{TMP+(b*4+r)}, 16, v{d}")
            else:
                a(f"v_and_b32 v{TMP+(b*4+r)}, 0xffff0000, v{d}")
    for i in range(8):
        a(f"v_pk_add_f32 v[{ACC+2*i}:{ACC+2*i+1}], v[{ACC+2*i}:{ACC+2*i+1}], v[{TMP+2*i}:{TMP+2*i+1}]")
    a("s_waitcnt lgkmcnt(0)")
    for i in range(8):
        a(f"v_pk_add_f32 v[{ACC+2*i}:{ACC+2*i+1}], v[{ACC+2*i}:{ACC+2*i+1}], v[{ACC+16+2*i}:{ACC+16+2*i+1}]")
    OB = 64
    for i in range(8):
        a(f"v_cvt_pk_bf16_f32 v{OB+i}, v{ACC+2*i}, v{ACC+2*i+1}")
    for b in range(4):
        a(f"buffer_store_dwordx2 v[{OB+2*b}:{OB+2*b+1}], v7, s[20:23], s32 offen offset:{b*32}")


def mega(label):
    a = Asm()
    common(a, label)
    bc, bh = Bars(), Bars()
    c_phase1(a, label, bc)
    c_phase2(a, label, bc)
    c_phase3(a, label, bc)
    c_phase4(a, label, bc)
    if TIMESTAMPS:
        a("s_waitcnt vmcnt(0)")
        stamp(a, "end")
        a("s_cmp_lg_u32 s26, 0")
        a(f"s_cbranch_scc1 L_end_{label}")
        a("v_readlane_b32 s92, v2, 0")
        a("v_readlane_b32 s93, v3, 0")
        a("v_mov_b32 v252, s92\nv_mov_b32 v253, s93\nv_mov_b32 v254, v2\nv_mov_b32 v255, v3")
        a("v_lshlrev_b32 v251, 12, v4")
        a("s_lshl_b32 s92, s2, 4")
        a(f"s_add_u32 s92, s92, {WS_TS}")
        a(f"s_mov_b64 exec, {(1 << len(STAMPS)) - 1}")
        a("buffer_store_dwordx4 v[252:255], v251, s[4:7], s92 offen")
        print("stamps:", list(enumerate(STAMPS)))
    a.label(f"L_end_{label}")
    a("s_endpgm")
    helper(a, label, bh)
    assert bc.seq == bh.seq, (bc.seq, bh.seq)
    return a


def build(fn):
    label = f"{NAME}_kernel"
    a = mega(label)
    o = open(f"cdna_kernels/{NAME}.s.ref").read().split("; Override launch")[0].rstrip("\n").split("\n")
    o.append("; @launch grid=(256,1,1) block=(512,1,1) lds=163840")
    o += ['.amdgcn_target "amdgcn-amd-amdhsa--gfx950"', ".text",
          f".globl {label}", ".p2align 8", f".type {label},@function", f"{label}:"]
    o += a.lines
    o += ['.section .rodata,"a"', ".p2align 6", f".amdhsa_kernel {label}",
          "  .amdhsa_next_free_vgpr 256", "  .amdhsa_next_free_sgpr 102", "  .amdhsa_accum_offset 256",
          "  .amdhsa_group_segment_fixed_size 0", "  .amdhsa_kernarg_size 80", "  .amdhsa_user_sgpr_count 2",
          "  .amdhsa_user_sgpr_kernarg_segment_ptr 1", "  .amdhsa_system_sgpr_workgroup_id_x 1",
          ".end_amdhsa_kernel"]
    open(fn, "w").write("\n".join(o) + "\n")


if __name__ == "__main__":
    import argparse
    ap = argparse.ArgumentParser()
    ap.add_argument("--ts", action="store_true")
    ap.add_argument("--exp", default="")
    ap.add_argument("-o", default=f"cdna_kernels/{NAME}.s")
    args = ap.parse_args()
    TIMESTAMPS = args.ts
    EXP = set(args.exp.split(",")) if args.exp else set()
    for e in EXP:
        if e.startswith("warmat"): WARM_AT = int(e[6:])
    build(args.o)
```

```python
import sys, math, struct
sys.path.insert(0, "tools")
from dsl import Asm

NAME = "sequential_preLN__sliding_local_dilated__geglu_ffn__prompt"
WS_O = 0
WS_H = 2 << 20
WS_ACT = 4 << 20
WS_STATS = 12 << 20
WS_FLAG = 13 << 20
WS_TS = 128 << 20
WS_SIZE = 268435456

TIMESTAMPS = False
EXP = set()
STAMPS = []
SC1 = " sc1"

P1_H, P1_RING, P1_SLOT, P1_NSLOT = 0, 16384, 28672, 5
P1_EX = 131328
P2_W = 0
P2_RED = 131328
P3_G, P3_U, P3_CS = 65552, 0, 148480
GATE_EARLY = 16
LFLAG = 163584
WARM_AT = 7


def f2h(x):
    return "0x%08x" % struct.unpack("<I", struct.pack("<f", x))[0]


def srd(a, r, src, size):
    a(f"s_mov_b32 s{r}, s{src}")
    a(f"s_and_b32 s{r+1}, s{src+1}, 0xffff")
    a(f"s_mov_b32 s{r+2}, {size}")
    a(f"s_mov_b32 s{r+3}, 0x00020000")


def stamp(a, name):
    if not TIMESTAMPS:
        return
    if name in STAMPS:
        i = STAMPS.index(name)
    else:
        i = len(STAMPS); STAMPS.append(name)
    a("s_memtime s[96:97]" if "cyc" in EXP else "s_memrealtime s[96:97]")
    a("s_waitcnt lgkmcnt(0)")
    a(f"v_writelane_b32 v2, s96, {i}")
    a(f"v_writelane_b32 v3, s97, {i}")


def interleave(a, main, side):
    ext = {}
    for pos, t in side:
        ext.setdefault(min(pos, len(main) - 1), []).append(t)
    for t in ext.get(-1, []):
        a(t)
    for i, m in enumerate(main):
        a(m)
        for t in ext.get(i, []):
            a(t)


def spread(items, start, end):
    n = len(items)
    return [(start + (i * (end - start)) // max(n, 1), t) for i, t in enumerate(items)]


class VM:
    def __init__(self):
        self.order = []

    def add(self, tag):
        self.order.append(tag)

    def wait_for(self, a, pred):
        idx = [i for i, t in enumerate(self.order) if pred(t)]
        if not idx:
            return
        n = len(self.order) - 1 - max(idx)
        a(f"s_waitcnt vmcnt({min(n, 63)})")


class Bars:
    def __init__(self):
        self.seq = []

    def __call__(self, a, name):
        self.seq.append(name)
        a("s_barrier")


def common(a, label):
    stamp(a, "start")
    a("s_load_dwordx16 s[64:79], s[0:1], 0")
    a("s_load_dwordx4 s[80:83], s[0:1], 64")
    a("s_cmp_ge_u32 s2, 256")
    a(f"s_cbranch_scc1 L_end_{label}")
    a("s_and_b32 s24, s2, 7")
    a("s_lshr_b32 s25, s2, 3")
    a("v_lshrrev_b32 v7, 6, v0")
    a("v_and_b32 v4, 63, v0")
    a("v_readfirstlane_b32 s26, v7")
    a("v_lshlrev_b32 v1, 4, v4")
    a("v_lshrrev_b32 v5, 4, v4")
    a("v_and_b32 v6, 15, v4")
    a("s_memrealtime s[90:91]")
    a("s_and_b32 s27, s26, 3")
    a("s_lshr_b32 s28, s25, 3")
    a("s_and_b32 s93, s25, 7")
    a("s_lshl_b32 s92, s24, 2")
    a("s_add_u32 s92, s92, s28")
    a("s_and_b32 s94, s24, 4")
    a("s_add_u32 s94, s94, s28")
    a("s_and_b32 s95, s24, 3")
    a("s_lshl_b32 s95, s95, 3")
    a("s_add_u32 s95, s95, s93")
    a("s_lshr_b32 s29, s24, 1")
    a("s_lshl_b32 s29, s29, 2")
    a("s_add_u32 s29, s29, s28")
    a("s_and_b32 s43, s24, 1")
    a("s_lshl_b32 s43, s43, 3")
    a("s_add_u32 s43, s43, s93")
    a("v_lshlrev_b32 v7, 2, v4")
    a(f"v_add_u32 v7, {LFLAG}, v7")
    a("v_mov_b32 v8, 0")
    a("ds_write_b32 v7, v8")
    a("s_cmp_ge_u32 s26, 4")
    a(f"s_cbranch_scc1 L_{label}_helper")


def flag_store(a, label, phase, tile_sreg):
    a("s_cmp_lg_u32 s26, 4")
    a(f"s_cbranch_scc1 L_{label}_sig{phase}")
    a(f"s_lshl_b32 s40, s{tile_sreg}, 7")
    a(f"s_add_u32 s40, s40, {WS_FLAG + (phase - 1) * 32768}")
    a("v_mov_b32 v8, s88")
    a("v_mov_b32 v9, 0")
    a("s_mov_b64 exec, 1")
    a("buffer_store_dword v8, v9, s[4:7], s40 offen sc1")
    a("s_mov_b64 exec, -1")
    a.label(f"L_{label}_sig{phase}")


def flag_poll(a, label, phase, first_sreg, n):
    a("s_cmp_lg_u32 s26, 4")
    a(f"s_cbranch_scc1 L_{label}_wt{phase}")
    a("s_mov_b32 s40, 0")
    a("v_lshlrev_b32 v8, 7, v4")
    a(f"s_lshl_b32 s41, s{first_sreg}, 7")
    a(f"s_add_u32 s41, s41, {WS_FLAG + (phase - 1) * 32768}")
    a(f"s_mov_b64 exec, {hex((1 << n) - 1)}")
    a.label(f"L_{label}_pl{phase}")
    a("buffer_load_dword v9, v8, s[4:7], s41 offen sc1")
    a("s_add_u32 s40, s40, 1")
    a("s_waitcnt vmcnt(0)")
    a("v_cmp_ne_u32 vcc, s88, v9")
    a("s_cmp_gt_u32 s40, 0x40000")
    a(f"s_cbranch_scc1 L_{label}_px{phase}")
    a(f"s_cbranch_vccnz L_{label}_pl{phase}")
    a.label(f"L_{label}_px{phase}")
    if phase < 3:
        a("s_mov_b64 exec, 1")
        a(f"ds_write_b32 v31, v19 offset:{64 + 4*phase}")
    a("s_mov_b64 exec, -1")
    a.label(f"L_{label}_wt{phase}")


def wait_lds(a, name, areg, treg, off, val=1):
    a.label(name)
    a(f"ds_read_b32 v{treg}, v{areg} offset:{off}")
    a("s_waitcnt lgkmcnt(0)")
    a(f"v_readfirstlane_b32 s40, v{treg}")
    a(f"s_cmp_lt_u32 s40, {val}")
    a(f"s_cbranch_scc1 {name}")


def helper(a, label, bar):
    a.label(f"L_{label}_helper")
    NSLOT = P1_NSLOT
    a("v_lshrrev_b32 v8, 3, v4")
    a("v_and_b32 v7, 7, v4")
    a("v_xor_b32 v7, v7, v8")
    a("v_lshlrev_b32 v8, 10, v8")
    a("v_lshl_add_u32 v20, v7, 4, v8")
    for j in range(3):
        a(f"v_add_u32 v12, {64*j}, v4")
        a("v_mul_u32_u24 v13, 43691, v12")
        a("v_lshrrev_b32 v13, 19, v13")
        a("v_mul_u32_u24 v14, 12, v13")
        a("v_sub_u32 v14, v12, v14")
        a("v_lshrrev_b32 v15, 1, v14")
        a("v_bfe_u32 v16, v13, 3, 1")
        a("v_sub_u32 v15, v15, v16")
        a("v_add_u32 v16, 6, v15")
        a("v_min_u32 v15, v15, v16")
        a("v_lshrrev_b32 v16, 1, v15")
        a("v_lshlrev_b32 v16, 10, v16")
        a("v_and_b32 v15, 1, v15")
        a("v_lshl_add_u32 v16, v15, 5, v16")
        a("v_and_b32 v14, 1, v14")
        a("v_lshl_add_u32 v16, v14, 4, v16")
        a("v_mul_u32_u24 v13, 3072, v13")
        a(f"v_add_u32 v{21+j}, v13, v16")
    if "rot4" in EXP:
        a("s_and_b32 s42, s25, 3"); a("s_lshl_b32 s42, s42, 1"); a("s_add_u32 s42, s42, s24")
    elif "rot2" in EXP:
        a("s_and_b32 s42, s25, 1"); a("s_lshl_b32 s42, s42, 2"); a("s_add_u32 s42, s42, s24")
    elif "rot8" in EXP:
        a("s_add_u32 s42, s29, s43")
    elif "rotm" in EXP:
        a("s_lshr_b32 s42, s25, 3"); a("s_lshl_b32 s42, s42, 1"); a("s_add_u32 s42, s42, s24")
    elif "rotx" in EXP:
        a("s_mov_b32 s42, s24")
    else:
        a("s_add_u32 s42, s29, s43")
    a("s_and_b32 s42, s42, 7")
    a("s_lshl_b32 s30, s27, 2")
    a("s_lshl_b32 s31, s42, 3")
    for i in range(4):
        a(f"s_add_u32 s32, s30, {i}")
        a("v_xor_b32 v12, s32, v4")
        a("v_add_u32 v12, s31, v12")
        a("v_and_b32 v12, 63, v12")
        a(f"v_lshlrev_b32 v{24+i}, 4, v12")
    a("s_lshl_b32 s30, s29, 17")
    a("s_lshl_b32 s31, s27, 15")
    a("s_add_u32 s31, s31, s30")
    a("s_lshl_b32 s32, s27, 12")
    a("s_add_u32 s32, s32, s30")
    a("s_sub_u32 s32, s32, 16384")
    a(f"s_mul_i32 s33, s27, {16 * 3072}")
    a("s_lshl_b32 s34, s43, 6")
    a("s_add_u32 s33, s33, s34")
    a("s_lshl_b32 s35, s27, 12")
    a(f"s_add_u32 s35, s35, {P1_RING}")
    a("s_mul_i32 s36, s27, 3072")
    a(f"s_add_u32 s36, s36, {P1_RING + 16384}")
    a("s_lshl_b32 s37, s27, 12")
    a(f"s_add_u32 s37, s37, {P1_H}")
    for c in range(8):
        a(f"s_add_u32 s{48+c}, s42, {c}")
        a(f"s_and_b32 s{48+c}, s{48+c}, 7")
    a("s_waitcnt lgkmcnt(0)")
    srd(a, 4, 82, WS_SIZE)
    srd(a, 8, 64, 2048 * 1024)
    srd(a, 16, 66, 512 * 3072)
    vm = VM()

    def issue_w(c):
        a(f"s_mul_i32 s38, s{48+c}, {64 * 3072}")
        a("s_add_u32 s38, s38, s33")
        for j in range(3):
            a(f"s_add_u32 m0, s36, {(c % NSLOT) * P1_SLOT + j * 1024}")
            a(f"buffer_load_dwordx4 v{21+j}, s[16:19], s38 offen lds")
            vm.add(("w", c))

    def issue_t(c):
        a(f"s_lshl_b32 s39, s{48+c}, 7")
        a("s_add_u32 s39, s39, s31")
        a(f"s_add_u32 m0, s35, {(c % NSLOT) * P1_SLOT}")
        for i in range(4):
            if i:
                a(f"s_add_u32 s39, s39, {8192 - 1024}")
            a(f"buffer_load_dwordx4 v20, s[8:11], s39 offen offset:{i*1024} lds")
            vm.add(("t", c))

    issue_w(0); issue_t(0)
    a("s_mov_b32 m0, s37")
    for i in range(4):
        a(f"buffer_load_dwordx4 v{24+i}, s[8:11], s32 offen offset:{i*1024} lds")
        vm.add(("h", 0))
    issue_w(1); issue_t(1)
    if "tlb" in EXP:
        a("v_lshlrev_b32 v40, 18, v4")
        a("v_lshlrev_b32 v41, 15, v4")
        a("s_cmp_lg_u32 s27, 0")
        a(f"s_cbranch_scc1 L_{label}_tl1")
        a("buffer_load_dword v42, v40, s[4:7], 0 offen sc1")
        srd(a, 56, 78, 2048 * 1024)
        a("buffer_load_dword v43, v41, s[56:59], 0 offen")
        a.label(f"L_{label}_tl1")
        a("s_cmp_lg_u32 s27, 1")
        a(f"s_cbranch_scc1 L_{label}_tl2")
        srd(a, 56, 68, 512 * 1024)
        a("buffer_load_dword v42, v41, s[56:59], 0 offen")
        srd(a, 56, 72, 512 * 3584)
        a("buffer_load_dword v43, v41, s[56:59], 0 offen")
        a.label(f"L_{label}_tl2")
        a("s_cmp_lg_u32 s27, 2")
        a(f"s_cbranch_scc1 L_{label}_tl3")
        srd(a, 56, 74, 512 * 3584)
        a("buffer_load_dword v42, v41, s[56:59], 0 offen")
        srd(a, 56, 76, 1792 * 1024)
        a("buffer_load_dword v43, v41, s[56:59], 0 offen")
        a.label(f"L_{label}_tl3")
        a("s_cmp_lg_u32 s27, 3")
        a(f"s_cbranch_scc1 L_{label}_tl4")
        a("buffer_load_dword v42, v41, s[8:11], 0 offen")
        a("buffer_load_dword v43, v41, s[16:19], 0 offen")
        a.label(f"L_{label}_tl4")
        vm.add(("tl", 0)); vm.add(("tl", 0))
    a("s_lshl_b32 s40, s2, 3")
    a("s_add_u32 s40, s40, s26")
    srd(a, 20, 80, 256)
    a("s_cmp_lg_u32 s40, 7")
    a(f"s_cbranch_scc1 L_{label}_noep")
    a("s_max_u32 s90, s90, 1")
    a("v_mov_b32 v17, s90")
    a("v_mov_b32 v18, 0")
    a("s_mov_b64 exec, 1")
    a("buffer_store_dword v17, v18, s[20:23], 0 offen sc1")
    a("s_mov_b64 exec, -1")
    a("s_waitcnt vmcnt(0)")
    a.label(f"L_{label}_noep")
    a("v_and_b32 v7, 7, v4")
    a("v_lshlrev_b32 v8, 1, v5")
    a("v_xor_b32 v7, v7, v8")
    a("v_lshrrev_b32 v8, 3, v4")
    a("v_lshlrev_b32 v9, 10, v8")
    a("v_lshl_add_u32 v28, v7, 4, v9")
    a("v_mul_u32_u24 v9, 3584, v8")
    a("v_lshl_add_u32 v29, v7, 4, v9")
    a("s_lshl_b32 s44, s27, 13")
    a("s_lshl_b32 s45, s93, 7")
    a("s_add_u32 s44, s44, s45")
    a(f"s_mul_i32 s45, s27, {8 * 3584}")
    a("s_mul_i32 s46, s95, 112")
    a("s_add_u32 s45, s45, s46")
    a("s_lshl_b32 s46, s27, 10")
    srd(a, 12, 68, 512 * 1024)
    a("s_cmp_lt_u32 s27, 2")
    a("s_cselect_b32 s56, s72, s74")
    a("s_cselect_b32 s57, s73, s75")
    a("s_and_b32 s57, s57, 0xffff")
    a(f"s_mov_b32 s58, {512*3584}")
    a("s_mov_b32 s59, 0x00020000")
    a("s_lshl_b32 s60, s25, 4")
    a("s_and_b32 s61, s27, 1")
    a("s_lshl_b32 s61, s61, 3")
    a("s_add_u32 s60, s60, s61")
    a("s_mul_i32 s60, s60, 3584")
    a("s_and_b32 s61, s24, 3")
    a("s_mul_i32 s61, s61, 896")
    a("s_add_u32 s60, s60, s61")
    a("s_lshl_b32 s61, s25, 14")
    a("s_lshl_b32 s47, s27, 12")
    a("s_add_u32 s61, s61, s47")
    warm = [f"buffer_load_dwordx4 v[{64+4*i}:{64+4*i+3}], v1, s[12:15], s61 offen offset:{i * 1024}" for i in range(4)]
    warm += [f"s_add_u32 s47, s60, {i * 3584}\nbuffer_load_dwordx4 v[{80+4*i}:{80+4*i+3}], v1, s[56:59], s47 offen" for i in range(8)]
    if "nopf" in EXP:
        warm = []
    a(f"v_mov_b32 v31, {LFLAG}")
    a("v_mov_b32 v19, 1")
    a("s_waitcnt lgkmcnt(0)")
    bar(a, "Z")

    def landed(c):
        vm.wait_for(a, lambda t: (t[0] in ("w", "t") and t[1] <= c) or t[0] == "h")
        a("s_mov_b64 exec, 1")
        a(f"ds_add_u32 v31, v19 offset:{4*c}")
        a("s_mov_b64 exec, -1")

    def wait_consumed(c):
        a.label(f"L_{label}_hc{c}")
        a(f"ds_read_b32 v17, v31 offset:{32 + 4*c}")
        a("s_waitcnt lgkmcnt(0)")
        a("v_readfirstlane_b32 s40, v17")
        a("s_cmp_lt_u32 s40, 4")
        a(f"s_cbranch_scc1 L_{label}_hc{c}")
    for op in "L0 I2 L1 I3 I4 L2 C0 I5 L3 C1 I6 L4 C2 I7 L5 L6 L7".split():
        c = int(op[1])
        if op[0] == "L":
            landed(c)
        elif op[0] == "C":
            wait_consumed(c)
        else:
            issue_w(c); issue_t(c)
    for x in warm:
        a(x); vm.add(("pf", 0))
    a("v_mov_b32 v18, 0")
    a("buffer_load_dword v30, v18, s[20:23], 0 offen sc1")
    vm.add(("ep", 0))
    srd(a, 16, 72, 512 * 3584)

    def p2_w_dma(i):
        a(f"s_add_u32 m0, s46, {P2_W + i * 4096}")
        a(f"s_add_u32 s47, s44, {32 * i * 1024}")
        a("buffer_load_dwordx4 v28, s[12:15], s47 offen lds")
        vm.add(("w2", i))

    def p3_w_dma(img, i, sr):
        a(f"s_add_u32 m0, s46, {img + i * 4096}")
        a(f"s_add_u32 s47, s45, {32 * i * 3584}")
        a(f"buffer_load_dwordx4 v29, s[{sr}:{sr+3}], s47 offen lds")
        vm.add(("w3", i))
    bar(a, "A1")
    for i in range(16):
        p2_w_dma(i)
    for i in range(GATE_EARLY):
        p3_w_dma(P3_G, i, 16)
    vm.wait_for(a, lambda t: t[0] == "w2")
    a("v_readfirstlane_b32 s88, v30")
    a("s_cmp_lg_u32 s88, 0")
    a(f"s_cbranch_scc1 L_{label}_epx")
    a("s_mov_b32 s40, 0")
    a.label(f"L_{label}_ep")
    a("buffer_load_dword v30, v18, s[20:23], 0 offen sc1")
    a("s_add_u32 s40, s40, 1")
    a("s_waitcnt vmcnt(0)")
    a("v_readfirstlane_b32 s88, v30")
    a("s_cmp_gt_u32 s40, 0x40000")
    a(f"s_cbranch_scc1 L_{label}_epx")
    a("s_cmp_eq_u32 s88, 0")
    a(f"s_cbranch_scc1 L_{label}_ep")
    a.label(f"L_{label}_epx")
    a("s_lshl_b32 s89, s29, 4")
    a("s_add_u32 s89, s89, s43")
    srd(a, 12, 74, 512 * 3584)
    bar(a, "L1")
    for i in range(GATE_EARLY, 16):
        p3_w_dma(P3_G, i, 16)
    bar(a, "S1")
    flag_store(a, label, 1, 89)
    a("s_cmp_eq_u32 s26, 4")
    a(f"s_cbranch_scc1 L_{label}_noups")
    a(f"s_sub_u32 s37, s45, {8 * 3584}")
    a("s_sub_u32 s38, s46, 1024")
    for i in range(22):
        if i == 21:
            a("s_cmp_lg_u32 s26, 5")
            a(f"s_cbranch_scc1 L_{label}_noups")
        a(f"s_add_u32 m0, s38, {P3_U + i * 3072}")
        a(f"s_add_u32 s47, s37, {24 * i * 3584}")
        a("buffer_load_dwordx4 v29, s[12:15], s47 offen lds")
    a.label(f"L_{label}_noups")
    a("s_lshr_b32 s89, s92, 1")
    a("s_lshl_b32 s89, s89, 4")
    flag_poll(a, label, 1, 89, 16)
    a("s_waitcnt vmcnt(0)")
    bar(a, "R2")
    srd(a, 12, 76, 1792 * 1024)
    a("v_lshrrev_b32 v12, 3, v4")
    a("v_and_b32 v13, 7, v4")
    a("v_and_b32 v14, 1, v5")
    a("v_lshlrev_b32 v14, 1, v14")
    a("s_and_b32 s44, s27, 1")
    a("s_lshl_b32 s44, s44, 2")
    a("v_xor_b32 v13, v13, v14")
    a("v_xor_b32 v13, s44, v13")
    a("v_lshlrev_b32 v13, 4, v13")
    a("v_lshrrev_b32 v14, 2, v12")
    a("v_lshl_add_u32 v36, v12, 10, v13")
    a("v_lshl_add_u32 v34, v14, 12, v36")
    a("v_mul_u32_u24 v14, 12288, v14")
    a("v_add_u32 v32, v14, v36")
    a("v_xor_b32 v33, 64, v32")
    a("v_xor_b32 v35, 64, v34")
    a("v_xor_b32 v37, 64, v36")
    a("s_lshl_b32 s45, s93, 7")
    a(f"s_mul_i32 s46, s27, {56 * 1024}")
    a("s_add_u32 s45, s45, s46")
    a(f"s_mul_i32 s46, s27, {7 * 1024}")
    a("s_lshl_b32 s89, s92, 3")
    a("s_add_u32 s89, s89, s93")
    bar(a, "S2")
    flag_store(a, label, 2, 89)
    a("s_lshl_b32 s89, s94, 5")
    flag_poll(a, label, 2, 89, 32)
    wait_lds(a, f"L_{label}_hf2", 31, 17, 64 + 8)
    if "nohw" not in EXP:
        a("s_lshl_b32 s40, s94, 18")
        a("s_lshl_b32 s41, s27, 16")
        a("s_add_u32 s40, s40, s41")
        a("s_lshl_b32 s41, s93, 11")
        a("s_add_u32 s40, s40, s41")
        a(f"s_add_u32 s40, s40, {WS_H}")
        for t in range(4):
            for q in range(2):
                a(f"s_add_u32 s41, s40, {t * 16384}")
                a(f"buffer_load_dwordx4 v[{128+8*t+4*q}:{128+8*t+4*q+3}], v1, s[4:7], s41 offen offset:{q*1024}{SC1}")
    if "nopf" not in EXP:
        a("s_sleep 32")
        a(f"s_mul_i32 s40, s25, {56 * 1024}")
        a(f"s_mul_i32 s41, s27, {14 * 1024}")
        a("s_add_u32 s40, s40, s41")
        for i in range(14):
            a(f"s_add_u32 s41, s40, {i * 1024}")
            a(f"buffer_load_dwordx4 v[{64+4*i}:{64+4*i+3}], v1, s[12:15], s41 offen")
            a("s_sleep 4")
    a("s_lshl_b32 s89, s94, 5")
    a("s_add_u32 s89, s89, s95")
    bar(a, "A3")

    def p4_w_dma(i):
        m, j = i // 7, i % 7
        rowbase = 4 * j if j < 4 else (32 + 4 * (j - 4) if j < 6 else 48)
        vreg = 32 + (j % 2) if j < 4 else (34 + (j % 2) if j < 6 else 36)
        a(f"s_add_u32 m0, s46, {(28 * m + j) * 1024}")
        a(f"s_add_u32 s47, s45, {(224 * m + rowbase) * 1024}")
        a(f"buffer_load_dwordx4 v{vreg}, s[12:15], s47 offen lds")
    for i in range(35):
        p4_w_dma(i)
    a("s_waitcnt vmcnt(14)")
    bar(a, "L3")
    a("s_waitcnt vmcnt(0)")
    bar(a, "S3")
    flag_store(a, label, 3, 89)
    a("s_cmp_eq_u32 s26, 4")
    a(f"s_cbranch_scc1 L_{label}_nolate")
    for i in range(28):
        m, j = i // 7, i % 7
        rowbase = 4 * j if j < 4 else (32 + 4 * (j - 4) if j < 6 else 48)
        par = (j + m + 1) % 2
        vreg = (32 if j < 4 else (34 if j < 6 else 36)) + par
        pos = (140 + 21 * m + j - 7) * 1024
        if m == 0:
            a(f"s_add_u32 s48, s46, {pos}\ns_sub_u32 s49, s48, 163840\ns_min_u32 m0, s48, s49")
        else:
            a(f"s_add_u32 m0, s46, {pos - 163840}")
        a(f"s_add_u32 s47, s45, {(56 * (20 + 3 * m - 1) + rowbase) * 1024}")
        a(f"buffer_load_dwordx4 v{vreg}, s[12:15], s47 offen lds")
    a.label(f"L_{label}_nolate")
    a("s_lshr_b32 s89, s92, 2")
    a("s_lshl_b32 s89, s89, 5")
    flag_poll(a, label, 3, 89, 32)
    bar(a, "F3")
    a("s_waitcnt vmcnt(0)")
    bar(a, "M4")
    bar(a, "Q4")
    bar(a, "R4")
    a("s_endpgm")


def tr_addr_perm(a):
    a("v_bfe_u32 v8, v4, 2, 2")
    a("v_lshl_add_u32 v9, v5, 2, v8")
    a("v_lshlrev_b32 v9, 7, v9")
    a("v_and_b32 v10, 3, v4")
    a("v_lshrrev_b32 v8, 1, v8")
    a("v_and_b32 v11, 1, v5")
    a("v_lshl_add_u32 v8, v11, 1, v8")
    a("v_lshl_add_u32 v12, v10, 3, v9")


def c_phase1(a, label, bar):
    NSLOT = P1_NSLOT
    TA0, HA, WA = 20, 22, 26
    WB, WC, TB0, TC0 = 240, 246, 252, 254
    a("s_lshl_b32 s35, s26, 12")
    a(f"s_add_u32 s35, s35, {P1_RING}")
    a("v_and_b32 v7, 7, v6")
    a("v_xor_b32 v7, v7, v5")
    a("v_lshlrev_b32 v8, 7, v6")
    a("v_lshl_add_u32 v8, v7, 4, v8")
    a(f"v_add_u32 v{TA0}, s35, v8")
    a(f"v_xor_b32 v{TA0+1}, 64, v{TA0}")
    for c1 in range(2):
        for h in range(2):
            a(f"v_add_u32 v7, {8*c1 + 4*h}, v5")
            a("v_xor_b32 v7, v7, v6")
            a("v_lshlrev_b32 v8, 10, v6")
            a("v_lshl_add_u32 v8, v7, 4, v8")
            a(f"v_add_u32 v{HA + 2*c1 + h}, {P1_H}, v8")
    a("v_bfe_u32 v7, v4, 2, 2")
    a("v_lshl_add_u32 v7, v5, 3, v7")
    a("v_mul_u32_u24 v7, 192, v7")
    a("v_and_b32 v8, 3, v4")
    a("v_lshl_add_u32 v7, v8, 3, v7")
    a("v_and_b32 v8, 1, v5")
    for b in range(6):
        a(f"v_add_u32 v12, {b}, v8")
        if b == 5:
            a("v_mul_u32_u24 v13, 6, v8")
            a("v_sub_u32 v12, v12, v13")
        a(f"v_lshl_add_u32 v{WA+b}, v12, 5, v7")
        a(f"v_add_u32 v{WA+b}, {P1_RING + 16384}, v{WA+b}")
        a(f"v_add_u32 v{WB+b}, {2 * P1_SLOT}, v{WA+b}")
        a(f"v_add_u32 v{WC+b}, {4 * P1_SLOT}, v{WA+b}")
    for h in range(2):
        a(f"v_add_u32 v{TB0+h}, {2 * P1_SLOT}, v{TA0+h}")
        a(f"v_add_u32 v{TC0+h}, {4 * P1_SLOT}, v{TA0+h}")
    ACC, RS, SQ, HX, ONES, FW, FT = 32, 80, 88, 96, 104, 108, 156
    MC, MP, MP0 = 228, 232, 236
    for i in range(ACC, ONES):
        a(f"v_mov_b32 v{i}, 0")
    for i in range(4):
        a(f"v_mov_b32 v{ONES+i}, 0x3f803f80")
    a("v_cmp_eq_u32 s[56:57], 0, v6")
    a("v_and_b32 v7, 3, v6")
    a("v_cmp_eq_u32 s[58:59], 1, v7")
    a("v_cmp_eq_u32 s[60:61], 2, v7")
    a("v_cmp_eq_u32 s[62:63], 3, v7")
    a("v_lshrrev_b32 v8, 2, v6")
    a("v_cmp_eq_u32 s[84:85], v8, v5")
    a("v_lshlrev_b32 v14, 2, v5")
    a("v_sub_u32 v14, v6, v14")
    a("v_mov_b32 v15, 0xff800000")
    for r in range(4):
        a(f"v_subrev_u32 v16, {r}, v14")
        a("v_and_b32 v17, 0x80000001, v16")
        a("v_cmp_eq_u32 vcc, 0, v17")
        a(f"v_cndmask_b32 v{MC+r}, v15, 0, vcc")
        a("v_add_u32 v16, 1, v16")
        a("v_and_b32 v17, 0x80000001, v16")
        a("v_xor_b32 v17, 0x80000001, v17")
        a("v_cmp_eq_u32 vcc, 0, v17")
        a(f"v_cndmask_b32 v{MP+r}, v15, 0, vcc")
    a("s_cmp_eq_u32 s29, 0")
    a("s_cselect_b32 s86, 0xff800000, 0")
    for r in range(4):
        a(f"v_add_f32 v{MP0+r}, s86, v{MP+r}")
    a(f"s_mov_b32 s87, {f2h(0.25 * 1.4426950408889634)}")
    a(f"v_mov_b32 v18, {LFLAG}")
    a("v_mov_b32 v19, 1")
    a("s_waitcnt lgkmcnt(0)")
    srd(a, 4, 82, WS_SIZE)
    srd(a, 8, 64, 2048 * 1024)
    bar(a, "Z")
    for w in range(1, 4):
        a(f"s_cmp_eq_u32 s26, {w}")
        a(f"s_cbranch_scc1 L_{label}_w{w}")
    seq0 = list(bar.seq)
    for w in range(4):
        if w:
            a.label(f"L_{label}_w{w}")
        bar.seq[:] = seq0

        def reads(s):
            c, h = s // 2, s % 2
            fw = FW + 24 * (s % 2); ft = FT + 12 * (s % 2)
            slot = c % NSLOT
            ta = (TA0, TB0, TC0)[slot // 2]; wa = (WA, WB, WC)[slot // 2]
            so = (slot % 2) * P1_SLOT
            out = []
            for t in range(2):
                out.append(f"ds_read_b128 v[{ft+4*t}:{ft+4*t+3}], v{ta + h} offset:{so + t * 2048}")
            for b in range(6):
                for h2 in range(2):
                    out.append(f"ds_read_b64_tr_b16 v[{fw+4*b+2*h2}:{fw+4*b+2*h2+1}], v{wa+b} offset:{so + h * 6144 + h2 * 768}")
            out.append(f"ds_read_b128 v[{ft+8}:{ft+11}], v{HA + 2*(c % 2) + h} offset:{(c // 2) * 256}")
            return out

        def wait_landed(c, first):
            L = f"L_{label}_cl{w}_{c}"
            if not first:
                a("v_readfirstlane_b32 s40, v17")
                a("s_cmp_ge_u32 s40, 4")
                a.raw(f"    s_cbranch_scc1 {L}x")
            a.raw(f"{L}:")
            a(f"ds_read_b32 v17, v18 offset:{4*c}")
            a("s_waitcnt lgkmcnt(0)")
            a("v_readfirstlane_b32 s40, v17")
            a("s_cmp_lt_u32 s40, 4")
            a.raw(f"    s_cbranch_scc1 {L}")
            a.raw(f"{L}x:")

        wait_landed(0, True)
        if w == 0:
            stamp(a, "p1 first data")
        for x in reads(0):
            a(x)
        for s in range(16):
            c, h = s // 2, s % 2
            fw = FW + 24 * (s % 2); ft = FT + 12 * (s % 2)
            a("s_waitcnt lgkmcnt(0)")
            W = lambda b: f"v[{fw+4*b}:{fw+4*b+3}]"
            T = lambda t: f"v[{ft+4*t}:{ft+4*t+3}]"
            mf = lambda acc, A, B: f"v_mfma_f32_16x16x32_bf16 v[{acc}:{acc+3}], {A}, {B}, v[{acc}:{acc+3}]"
            M = []
            for t in range(2):
                for b in range(4):
                    M.append(mf(ACC + (b * 2 + t) * 4, W(b), T(t)))
                for b in range(4, 6):
                    M.append(mf(ACC + (b * 2 + t) * 4, T(t), W(b)))
                M.append(mf(RS + 4 * t, f"v[{ONES}:{ONES+3}]", T(t)))
                M.append(mf(SQ + 4 * t, T(t), T(t)))
            if w < 2:
                M += [mf(HX, W(2 + w), T(2)), mf(HX + 4, W(w), T(2))]
            elif w == 2:
                M += [mf(HX, T(2), W(4)), mf(HX + 4, T(2), W(5))]
            else:
                M += [mf(HX, f"v[{ONES}:{ONES+3}]", T(2)), mf(HX + 4, T(2), T(2))]
            a(M[0]); a(M[1])
            if s + 1 < 16:
                if h == 1:
                    if c < 3 or c == 4:
                        a("s_mov_b64 exec, 1")
                        a(f"ds_add_u32 v18, v19 offset:{32 + 4*c}")
                        a("s_mov_b64 exec, -1")
                    wait_landed(c + 1, False)
                    if w == 0 and "chunkts" in EXP: stamp(a, f"c{c+1}")
            R = reads(s + 1) if s + 1 < 16 else []
            if h == 0 and c + 1 < 8:
                R = R + [f"ds_read_b32 v17, v18 offset:{4*(c+1)}"]
            side = [(i * 2 // 3, x) for i, x in enumerate(R)]
            side += [(10 + i, f"v_cndmask_b32 v{ft+8+i}, v{ft+8+i}, v{ONES}, s[56:57]") for i in range(4)]
            interleave(a, M[2:], side)
        if w == 0:
            stamp(a, "p1 loop done")
        PV = lambda ww: P1_EX + ww * 3072
        a.label(f"L_{label}_cx{w}")
        a(f"ds_read_b32 v17, v18 offset:{32 + 16}")
        a("s_waitcnt lgkmcnt(0)")
        a("v_readfirstlane_b32 s40, v17")
        a("s_cmp_lt_u32 s40, 4")
        a(f"s_cbranch_scc1 L_{label}_cx{w}")
        a("v_lshlrev_b32 v9, 3, v6")
        a(f"v_add_u32 v9, {PV(w)}, v9")

        def stats(rs, sq, off):
            a(f"v_cndmask_b32 v10, v{sq}, v{sq+1}, s[58:59]")
            a(f"v_cndmask_b32 v10, v10, v{sq+2}, s[60:61]")
            a(f"v_cndmask_b32 v10, v10, v{sq+3}, s[62:63]")
            a(f"v_mul_f32 v11, {1.0/512!r}, v{rs}")
            a(f"v_mul_f32 v10, {1.0/512!r}, v10")
            a("v_fma_f32 v10, -v11, v11, v10")
            a("v_max_f32 v10, 0, v10")
            a("v_add_f32 v10, 0x3727c5ac, v10")
            a("v_rsq_f32 v12, v10")
            a("v_mul_f32 v13, v11, v12")
            a("v_sub_f32 v13, 0, v13")
            a("s_mov_b64 exec, s[84:85]")
            a(f"ds_write_b64 v9, v[12:13] offset:{off}")
            a("s_mov_b64 exec, -1")
        a(f"v_add_u32 v14, {P1_EX}, v1")
        stats(RS, SQ, 0)
        for i, b in enumerate((2, 3, 4, 5)):
            acc = ACC + (b * 2 + 1) * 4
            a(f"ds_write_b128 v14, v[{acc}:{acc+3}] offset:{12288 + w*4096 + i*1024}")
        stats(RS + 4, SQ + 4, 128)
        if w == 3:
            stats(HX, HX + 4, 256)
        if w < 3:
            a(f"ds_write_b128 v14, v[{HX}:{HX+3}] offset:{w*3072 + 1024}")
            if w == 2:
                a(f"ds_write_b128 v14, v[{HX+4}:{HX+7}] offset:{w*3072 + 2048}")
        if w < 2:
            a("v_lshlrev_b32 v11, 4, v5")
            a(f"v_add_u32 v11, {PV(w)}, v11")
            a("s_mov_b64 exec, s[56:57]")
            a(f"ds_write_b128 v11, v[{HX}:{HX+3}] offset:512")
            a(f"ds_write_b128 v11, v[{HX+4}:{HX+7}] offset:576")
            a("s_mov_b64 exec, -1")
        elif w == 2:
            a("v_lshlrev_b32 v11, 2, v6")
            a(f"v_add_u32 v11, {PV(w)}, v11")
            a("s_mov_b64 exec, 0xffff")
            a(f"ds_write_b32 v11, v{HX} offset:512")
            a(f"ds_write_b32 v11, v{HX+4} offset:576")
            a("s_mov_b64 exec, -1")
        SA, SV, CQ, CV, PR = 108, 116, 140, 156, 160
        a("v_lshlrev_b32 v9, 3, v6")
        a("v_lshlrev_b32 v10, 5, v5")
        a("v_lshlrev_b32 v11, 4, v5")
        a("v_lshlrev_b32 v12, 2, v6")
        for r in (9, 10, 11, 12):
            a(f"v_add_u32 v{r}, {P1_EX}, v{r}")
        a("s_waitcnt lgkmcnt(0)")
        bar(a, "A1")
        rel = lambda ww: ww * 3072
        prev_st = rel(3) + 256 if w == 0 else rel(w - 1) + 128
        for i, off in ((1, rel(w)), (0, prev_st), (2, rel(w) + 128)):
            a(f"ds_read_b64 v[{SA+2*i}:{SA+2*i+1}], v9 offset:{off}")
            if i == 1:
                for hd in range(2):
                    a(f"ds_read_b128 v[{CQ+4*hd}:{CQ+4*hd+3}], v11 offset:{rel(hd) + 576}")
                    a(f"ds_read_b128 v[{CQ+8+4*hd}:{CQ+8+4*hd+3}], v11 offset:{rel(hd) + 512}")
                    a(f"ds_read_b32 v{CV+hd}, v12 offset:{rel(2) + 512 + 64*hd}")
            a(f"ds_read_b128 v[{SV+8*i}:{SV+8*i+3}], v10 offset:{off}")
            a(f"ds_read_b128 v[{SV+8*i+4}:{SV+8*i+7}], v10 offset:{off+16}")
        if w == 0:
            srcs = (rel(0) + 1024, rel(1) + 1024, rel(2) + 1024, rel(2) + 2048)
        else:
            srcs = tuple(12288 + (w - 1) * 4096 + i * 1024 for i in range(4))
        for i, off in enumerate(srcs):
            a(f"ds_read_b128 v[{PR+4*i}:{PR+4*i+3}], v14 offset:{off}")
        e = a
        PKB = 188
        pk = lambda b, tb: PKB + (b * 3 + tb) * 2
        src = lambda b, tb: PR + 4 * (b - 2) if tb == 0 else ACC + (b * 2 + tb - 1) * 4
        n = 0
        a("s_waitcnt lgkmcnt(10)")
        for tb in (1, 2, 0):
            if tb == 2:
                a("s_waitcnt lgkmcnt(0)")
            for b in range(6):
                if tb == 0 and b < 2:
                    continue
                r0 = src(b, tb)
                for r in range(4):
                    tmp = 16 + (n % 4); n += 1
                    if b < 4:
                        e(f"v_mul_f32 v{tmp}, v{CQ+4*b+r}, v{SA+2*tb+1}")
                        e(f"v_fmac_f32 v{tmp}, v{r0+r}, v{SA+2*tb}")
                    else:
                        e(f"v_mul_f32 v{tmp}, v{CV+b-4}, v{SV+8*tb+2*r+1}")
                        e(f"v_fmac_f32 v{tmp}, v{r0+r}, v{SV+8*tb+2*r}")
                e(f"v_cvt_pk_bf16_f32 v{pk(b,tb)}, v16, v17")
                e(f"v_cvt_pk_bf16_f32 v{pk(b,tb)+1}, v18, v19")
        SB_, OB_, PB_, OUT = 32, 64, 80, 96
        units = [(t, hd) for t in range(2) for hd in range(2)]
        P2 = lambda r: f"v[{r}:{r+1}]"
        for u, (t, hd) in enumerate(units):
            e(f"v_mfma_f32_16x16x16_bf16 v[{SB_+8*u}:{SB_+8*u+3}], {P2(pk(2+hd, t))}, {P2(pk(hd, t+1))}, 0")
            e(f"v_mfma_f32_16x16x16_bf16 v[{SB_+8*u+4}:{SB_+8*u+7}], {P2(pk(2+hd, t+1))}, {P2(pk(hd, t+1))}, 0")
        MX, SM, TC = 108, 112, 116
        for u, (t, hd) in enumerate(units):
            mp = MP0 if (w == 0 and t == 0) else MP
            for r in range(4):
                e(f"v_fma_f32 v{SB_+8*u+r}, v{SB_+8*u+r}, s87, v{mp+r}")
                e(f"v_fma_f32 v{SB_+8*u+4+r}, v{SB_+8*u+4+r}, s87, v{MC+r}")
            S = lambda i: f"v{SB_+8*u+i}"
            e(f"v_max3_f32 v{MX+u}, {S(0)}, {S(1)}, {S(2)}")
            e(f"v_max3_f32 v{MX+u}, v{MX+u}, {S(3)}, {S(4)}")
            e(f"v_max3_f32 v{MX+u}, v{MX+u}, {S(5)}, {S(6)}")
            e(f"v_max_f32 v{MX+u}, v{MX+u}, {S(7)}")
        for sw in ("v_permlane32_swap_b32", "v_permlane16_swap_b32"):
            for u in range(4):
                e(f"v_mov_b32 v{TC+u}, v{MX+u}")
            for u in range(4):
                e(f"{sw} v{MX+u}, v{TC+u}")
            for u in range(4):
                e(f"v_max_f32 v{MX+u}, v{MX+u}, v{TC+u}")
        for u in range(4):
            for i in range(8):
                e(f"v_sub_f32 v{SB_+8*u+i}, v{SB_+8*u+i}, v{MX+u}")
            for i in range(8):
                e(f"v_exp_f32 v{SB_+8*u+i}, v{SB_+8*u+i}")
        for u in range(4):
            e(f"v_add_f32 v{SM+u}, v{SB_+8*u}, v{SB_+8*u+1}")
            for i in range(2, 8):
                e(f"v_add_f32 v{SM+u}, v{SM+u}, v{SB_+8*u+i}")
        for sw in ("v_permlane32_swap_b32", "v_permlane16_swap_b32"):
            for u in range(4):
                e(f"v_mov_b32 v{TC+u}, v{SM+u}")
            for u in range(4):
                e(f"{sw} v{SM+u}, v{TC+u}")
            for u in range(4):
                e(f"v_add_f32 v{SM+u}, v{SM+u}, v{TC+u}")
        for u in range(4):
            e(f"v_rcp_f32 v{SM+u}, v{SM+u}")
        for u in range(4):
            for i in range(8):
                e(f"v_mul_f32 v{SB_+8*u+i}, v{SB_+8*u+i}, v{SM+u}")
            for i in range(4):
                e(f"v_cvt_pk_bf16_f32 v{PB_+4*u+i}, v{SB_+8*u+2*i}, v{SB_+8*u+2*i+1}")
        for u, (t, hd) in enumerate(units):
            e(f"v_mfma_f32_16x16x16_bf16 v[{OB_+4*u}:{OB_+4*u+3}], {P2(pk(4+hd, t))}, {P2(PB_+4*u)}, 0")
        for u, (t, hd) in enumerate(units):
            e(f"v_mfma_f32_16x16x16_bf16 v[{OB_+4*u}:{OB_+4*u+3}], {P2(pk(4+hd, t+1))}, {P2(PB_+4*u+2)}, v[{OB_+4*u}:{OB_+4*u+3}]")
        a("s_lshl_b32 s38, s29, 17")
        a("s_lshl_b32 s39, s43, 10")
        a("s_add_u32 s38, s38, s39")
        a(f"s_add_u32 s38, s38, {WS_O + 2 * w * 16384}")
        a("s_add_u32 s39, s38, 16384")
        for u, (t, hd) in enumerate(units):
            a(f"v_cvt_pk_bf16_f32 v{OUT+4*t+2*hd}, v{OB_+4*u}, v{OB_+4*u+1}")
            a(f"v_cvt_pk_bf16_f32 v{OUT+4*t+2*hd+1}, v{OB_+4*u+2}, v{OB_+4*u+3}")
        for t in range(2):
            a(f"buffer_store_dwordx4 v[{OUT+4*t}:{OUT+4*t+3}], v1, s[4:7], s{38+t} offen{SC1}")
        if w < 3:
            a(f"s_branch L_{label}_p1join")
    a.label(f"L_{label}_p1join")
    stamp(a, "p1 stored")


def gemm22_setup(a):
    a("s_and_b32 s30, s26, 1")
    a("s_lshr_b32 s31, s26, 1")
    a("s_lshl_b32 s29, s92, 2")
    a("s_lshl_b32 s32, s30, 1")
    a("s_add_u32 s29, s29, s32")
    a("s_add_u32 s33, s29, s31")
    a("s_xor_b32 s32, s31, 1")
    a("s_add_u32 s34, s29, s32")
    a("s_mov_b32 s29, s33")


def gemm22_reduce(a, bar, name, ACC, red_base):
    a("s_xor_b32 s36, s26, 2")
    a("s_lshl_b32 s36, s36, 12")
    a(f"s_add_u32 s36, s36, {red_base}")
    a("v_add_u32 v14, s36, v1")
    a("s_lshl_b32 s36, s26, 12")
    a(f"s_add_u32 s36, s36, {red_base}")
    a("v_add_u32 v15, s36, v1")
    for b in range(4):
        a(f"ds_write_b128 v14, v[{ACC+16+4*b}:{ACC+16+4*b+3}] offset:{b*1024}")
    a("s_waitcnt lgkmcnt(0)")
    bar(a, name)
    for b in range(4):
        a(f"ds_read_b128 v[{ACC+16+4*b}:{ACC+16+4*b+3}], v15 offset:{b*1024}")


P3_AD_ = 7


def c_phase2(a, label, bar):
    FR, TK, ACC, RB = 112, 48, 16, 240
    gemm22_setup(a)
    tr_addr_perm(a)
    a("s_lshl_b32 s36, s31, 12")
    a("v_add_u32 v12, s36, v12")
    for b in range(4):
        a(f"v_xor_b32 v11, {b}, v8")
        a(f"v_lshl_add_u32 v{248+b}, v11, 5, v12")
    bar(a, "L1")
    for i in range(8):
        for b in range(4):
            for h in range(2):
                r = FR + i * 16 + b * 4 + 2 * h
                a(f"ds_read_b64_tr_b16 v[{r}:{r+1}], v{248+b} offset:{P2_W + i*8192 + h*2048}")
    for i in range(32):
        a(f"v_mov_b32 v{ACC+i}, 0")
    a("v_lshlrev_b32 v7, 10, v6")
    a("v_lshl_add_u32 v7, v5, 3, v7")
    a("s_lshl_b32 s32, s29, 14")
    a("s_lshl_b32 s35, s93, 7")
    a("s_add_u32 s32, s32, s35")
    a("s_lshl_b32 s37, s31, 10")
    a("s_lshl_b32 s33, s33, 14")
    a("s_lshl_b32 s34, s34, 14")
    a(f"s_add_u32 s35, s33, {WS_H}")
    a("s_lshl_b32 s36, s93, 11")
    a("s_add_u32 s35, s35, s36")
    a("s_add_u32 s33, s33, s37")
    a("s_add_u32 s34, s34, s37")
    a("s_waitcnt vmcnt(0) lgkmcnt(0)")
    stamp(a, "p1 drained")
    bar(a, "S1")
    for b in range(4):
        a(f"buffer_load_dwordx2 v[{RB+2*b}:{RB+2*b+1}], v7, s[8:11], s32 offen offset:{b*32}")
    a(f"v_mov_b32 v14, {LFLAG}")
    wait_lds(a, f"L_{label}_cf1", 14, 15, 64 + 4)
    stamp(a, "p2 flags ok")
    for i in range(8):
        for t in range(2):
            if i % 2 == 0 and i:
                a(f"s_add_u32 s{33+t}, s{33+t}, 4096")
            a(f"buffer_load_dwordx4 v[{TK+8*i+4*t}:{TK+8*i+4*t+3}], v1, s[4:7], s{33+t} offen offset:{(i % 2) * 2048}{SC1}")
    for i in range(8):
        a(f"s_waitcnt vmcnt({2 * (7 - i)})")
        if i == 0:
            stamp(a, "p2 first data")
        for t in (1, 0):
            for b in range(4):
                acc = ACC + 16 * t + 4 * b
                a(f"v_mfma_f32_16x16x32_bf16 v[{acc}:{acc+3}], v[{FR+i*16+4*b}:{FR+i*16+4*b+3}], v[{TK+8*i+4*t}:{TK+8*i+4*t+3}], v[{acc}:{acc+3}]")
    gemm22_reduce(a, bar, "R2", ACC, P2_RED)
    TMP = 48
    for b in range(4):
        for r in range(4):
            d = RB + 2 * b + r // 2
            if r % 2 == 0:
                a(f"v_lshlrev_b32 v{TMP+(b*4+r)}, 16, v{d}")
            else:
                a(f"v_and_b32 v{TMP+(b*4+r)}, 0xffff0000, v{d}")
    for i in range(8):
        a(f"v_pk_add_f32 v[{ACC+2*i}:{ACC+2*i+1}], v[{ACC+2*i}:{ACC+2*i+1}], v[{TMP+2*i}:{TMP+2*i+1}]")
    a("s_waitcnt lgkmcnt(0)")
    for i in range(8):
        a(f"v_pk_add_f32 v[{ACC+2*i}:{ACC+2*i+1}], v[{ACC+2*i}:{ACC+2*i+1}], v[{ACC+16+2*i}:{ACC+16+2*i+1}]")
    OB = 64
    for i in range(8):
        a(f"v_cvt_pk_bf16_f32 v{OB+i}, v{ACC+2*i}, v{ACC+2*i+1}")
    for hh in range(2):
        a(f"buffer_store_dwordx4 v[{OB+4*hh}:{OB+4*hh+3}], v1, s[4:7], s35 offen offset:{hh*1024}{SC1}")
    for d in range(8):
        a(f"v_lshlrev_b32 v{TMP+2*d}, 16, v{OB+d}")
        a(f"v_and_b32 v{TMP+2*d+1}, 0xffff0000, v{OB+d}")
    S0 = OB + 8; S1 = S0 + 1
    a(f"v_add_f32 v{S0}, v{TMP}, v{TMP+1}")
    a(f"v_mul_f32 v{S1}, v{TMP}, v{TMP}")
    a(f"v_fmac_f32 v{S1}, v{TMP+1}, v{TMP+1}")
    for i in range(2, 16):
        a(f"v_add_f32 v{S0}, v{S0}, v{TMP+i}")
        a(f"v_fmac_f32 v{S1}, v{TMP+i}, v{TMP+i}")
    C0, C1 = S0 + 2, S0 + 3
    for sw in ("v_permlane32_swap_b32", "v_permlane16_swap_b32"):
        a(f"v_mov_b32 v{C0}, v{S0}")
        a(f"v_mov_b32 v{C1}, v{S1}")
        a(f"{sw} v{S0}, v{C0}")
        a(f"{sw} v{S1}, v{C1}")
        a(f"v_add_f32 v{S0}, v{S0}, v{C0}")
        a(f"v_add_f32 v{S1}, v{S1}, v{C1}")
    a("v_lshlrev_b32 v14, 3, v6")
    a("s_lshl_b32 s39, s29, 10")
    a("s_lshl_b32 s40, s93, 7")
    a("s_add_u32 s39, s39, s40")
    a(f"s_add_u32 s39, s39, {WS_STATS}")
    a("s_mov_b64 exec, 0xffff")
    a(f"buffer_store_dwordx2 v[{S0}:{S1}], v14, s[4:7], s39 offen{SC1}")
    a("s_mov_b64 exec, -1")
    stamp(a, "p2 stored")
    a("s_waitcnt vmcnt(0)")
    stamp(a, "p2 drained")
    bar(a, "S2")


def c_phase3(a, label, bar):
    NS, D = 16, 4
    AD = P3_AD_
    ACC, FB, TK, AB = 16, 128, 184, 248
    tr_addr_perm(a)
    for b in range(3):
        a(f"v_xor_b32 v11, {b}, v8")
        a(f"v_lshl_add_u32 v{243+b}, v11, 5, v12")
        a(f"v_add_u32 v{240+b}, {P3_G}, v{243+b}")
    a("v_xor_b32 v11, 3, v8")
    a("v_lshl_add_u32 v12, v11, 5, v9")
    a("v_and_b32 v11, 1, v10")
    a("v_lshl_add_u32 v12, v11, 3, v12")
    a("v_lshrrev_b32 v11, 1, v10")
    a("v_xor_b32 v11, 1, v11")
    a(f"v_mul_u32_u24 v11, {P3_G}, v11")
    a("v_add_u32 v246, v11, v12")
    for b in range(7):
        a(f"v_mov_b32 v{AD+b}, v{240+b}")
    a(f"v_mov_b32 v14, v{AD}")
    a(f"v_mov_b32 v15, v{AD+4}")
    for w in range(1, 4):
        a(f"s_cmp_eq_u32 s26, {w}")
        a("s_cselect_b64 vcc, -1, 0")
        a(f"v_cndmask_b32 v14, v14, v{AD+w}, vcc")
        a(f"v_cndmask_b32 v15, v15, v{AD+min(w+4,6)}, vcc")
    CF, CA, ONES = 112, 16, 24
    for s in range(16):
        for q in range(2):
            for h in range(2):
                r = CF + s * 8 + q * 4 + 2 * h
                a(f"ds_read_b64_tr_b16 v[{r}:{r+1}], v{14+q} offset:{s*4096 + h*2048}")
    for i in range(8):
        a(f"v_mov_b32 v{CA+i}, 0")
    for i in range(4):
        a(f"v_mov_b32 v{ONES+i}, 0x3f803f80")
    a("s_waitcnt lgkmcnt(0)")
    for s in range(16):
        for q in range(2):
            a(f"v_mfma_f32_16x16x32_bf16 v[{CA+4*q}:{CA+4*q+3}], v[{CF+s*8+4*q}:{CF+s*8+4*q+3}], v[{ONES}:{ONES+3}], v[{CA+4*q}:{CA+4*q+3}]")
    a("s_lshl_b32 s35, s26, 6")
    a(f"s_add_u32 s35, s35, {P3_CS}")
    a("v_lshlrev_b32 v14, 4, v5")
    a("v_add_u32 v15, s35, v14")
    a(f"v_add_u32 v14, {P3_CS}, v14")
    a("s_mov_b32 exec_lo, 0x00010001")
    a("s_mov_b32 exec_hi, 0x00010001")
    a(f"ds_write_b128 v15, v[{CA}:{CA+3}]")
    a(f"ds_write_b128 v15, v[{CA+4}:{CA+7}] offset:256")
    a("s_mov_b64 exec, -1")

    def reads(s):
        fb = FB + 28 * (s % 2)
        return [f"ds_read_b64_tr_b16 v[{fb+4*b+2*h}:{fb+4*b+2*h+1}], v{AD+b} offset:{s*4096 + h*2048}"
                for b in range(7) for h in range(2)]
    for x in reads(0):
        a(x)
    a("s_lshl_b32 s29, s94, 18")
    a("s_lshl_b32 s30, s26, 16")
    a("s_add_u32 s29, s29, s30")
    a(f"s_add_u32 s30, s29, {WS_H}")
    a("v_lshlrev_b32 v15, 3, v6")
    a("v_lshl_add_u32 v15, v5, 7, v15")
    a("s_lshl_b32 s33, s94, 14")
    a("s_lshl_b32 s34, s26, 12")
    a("s_add_u32 s33, s33, s34")
    a(f"s_add_u32 s33, s33, {WS_STATS}")
    a("s_waitcnt lgkmcnt(0)")
    stamp(a, "p3 colsum")
    a(f"v_mov_b32 v248, {LFLAG}")
    a("v_mov_b32 v249, 1")
    a("s_mov_b64 exec, 1")
    a("ds_add_u32 v248, v249 offset:96")
    a("s_mov_b64 exec, -1")
    wait_lds(a, f"L_{label}_cf2", 248, 249, 64 + 8)
    stamp(a, "p3 flags ok")
    vm = VM()

    def tok(s):
        slot = s % D
        return [f"s_add_u32 s32, s30, {t * 16384 + (s // 4) * 4096}\n"
                f"buffer_load_dwordx4 v[{TK+slot*16+4*t}:{TK+slot*16+4*t+3}], v1, s[4:7], s32 offen offset:{(s % 4) * 1024}{SC1}"
                for t in range(4)]
    for s in range(D):
        for x in tok(s):
            a(x); vm.add(("t", s))
    STR = TK
    for s in range(NS):
        slot = s % D
        fb = FB + 28 * (s % 2)
        a("s_waitcnt lgkmcnt(0)")
        vm.wait_for(a, lambda t: t[0] == "t" and t[1] <= s)
        if s == 0:
            stamp(a, "p3 first data")
        if s == 15:
            wait_lds(a, f"L_{label}_ccs", 248, 249, 96, 4)
        M = []
        for t in range(4):
            for b in range(7):
                acc = ACC + (b * 4 + t) * 4
                csrc = "0" if s == 0 else f"v[{acc}:{acc+3}]"
                M.append(f"v_mfma_f32_16x16x32_bf16 v[{acc}:{acc+3}], v[{fb+4*b}:{fb+4*b+3}], v[{TK+slot*16+4*t}:{TK+slot*16+4*t+3}], {csrc}")
        R = reads(s + 1) if s + 1 < NS else []
        side = [(i, x) for i, x in enumerate(R)]
        if s + D < NS:
            side += [(7 * t + 6, x) for t, x in enumerate(tok(s + D))]
            for _ in range(4):
                vm.add(("t", s + D))
        if s == 12:
            for t in range(4):
                for q in range(2):
                    side.append((7 * t + 6, f"buffer_load_dwordx2 v[{STR+4*t+2*q}:{STR+4*t+2*q+1}], v15, s[4:7], s33 offen offset:{t*1024 + q*512}{SC1}"))
                    vm.add(("st", 0))
        if s == 15:
            side += [(b, f"ds_read_b128 v[{FB+4*b}:{FB+4*b+3}], v14 offset:{b*64}") for b in range(7)]
            sv = ["s_waitcnt vmcnt(0)"]
            for t in range(4):
                r = STR + 4 * t
                sv += [f"v_add_f32 v{r}, v{r}, v{r+2}", f"v_add_f32 v{r+1}, v{r+1}, v{r+3}"]
            for sw in ("v_permlane32_swap_b32", "v_permlane16_swap_b32"):
                for t in range(4):
                    r = STR + 4 * t
                    sv += [f"v_mov_b32 v{r+2}, v{r}", f"v_mov_b32 v{r+3}, v{r+1}"]
                for t in range(4):
                    r = STR + 4 * t
                    sv += [f"{sw} v{r}, v{r+2}", f"{sw} v{r+1}, v{r+3}"]
                for t in range(4):
                    r = STR + 4 * t
                    sv += [f"v_add_f32 v{r}, v{r}, v{r+2}", f"v_add_f32 v{r+1}, v{r+1}, v{r+3}"]
            for t in range(4):
                r = STR + 4 * t
                sv += [f"v_mul_f32 v{r}, {-1.0/512!r}, v{r}", f"v_mul_f32 v{r+1}, {1.0/512!r}, v{r+1}",
                       f"v_fma_f32 v{r+1}, -v{r}, v{r}, v{r+1}", f"v_max_f32 v{r+1}, 0, v{r+1}",
                       f"v_add_f32 v{r+1}, 0x3727c5ac, v{r+1}", f"v_rsq_f32 v{AB+2*t}, v{r+1}",
                       f"v_mov_b32 v{r+1}, v{r}", f"v_mov_b32 v{AB+2*t+1}, v{AB+2*t}"]
            side += spread(sv, 0, 28)
        interleave(a, M, side)
    stamp(a, "p3 loop done")
    a("s_waitcnt lgkmcnt(0)")
    bar(a, "A3")
    CSR = FB
    T = 156
    KA_, KB_ = 204, 206
    cA = -2.0 * 0.7978845608028654 * 1.4426950408889634
    cB = cA * 0.044715
    e = a
    e(f"v_mov_b32 v{KA_}, {f2h(cA)}"); e(f"v_mov_b32 v{KA_+1}, {f2h(cA)}")
    e(f"v_mov_b32 v{KB_}, {f2h(cB)}"); e(f"v_mov_b32 v{KB_+1}, {f2h(cB)}")
    e("v_and_b32 v8, 1, v5")
    e("v_lshlrev_b32 v8, 8, v8")
    e("v_lshl_add_u32 v8, v6, 4, v8")
    e("v_lshrrev_b32 v9, 1, v5")
    e(f"v_mul_u32_u24 v10, {56*1024}, v9")
    e("v_add_u32 v8, v10, v8")
    e("v_and_b32 v11, 1, v5")
    e("v_lshl_add_u32 v9, v11, 1, v9")
    e(f"v_mul_u32_u24 v9, {56*1024}, v9")
    e("v_lshl_add_u32 v9, v6, 4, v9")
    e(f"s_mul_i32 s36, s94, {16 * 56 * 1024}")
    e(f"s_mul_i32 s37, s26, {4 * 56 * 1024}")
    e("s_add_u32 s36, s36, s37")
    e(f"s_mul_i32 s37, s95, {7 * 256}")
    e("s_add_u32 s36, s36, s37")
    e(f"s_add_u32 s36, s36, {WS_ACT}")

    def scale(r0, t):
        b = (r0 - ACC) // 16
        for h in range(2):
            e(f"v_pk_fma_f32 v[{r0+2*h}:{r0+2*h+1}], v[{CSR+4*b+2*h}:{CSR+4*b+2*h+1}], v[{STR+4*t}:{STR+4*t+1}], v[{r0+2*h}:{r0+2*h+1}]")
            e(f"v_pk_mul_f32 v[{r0+2*h}:{r0+2*h+1}], v[{r0+2*h}:{r0+2*h+1}], v[{AB+2*t}:{AB+2*t+1}]")

    def geglu(gr, ur, outr, tb):
        for h in range(2):
            g = f"v[{gr+2*h}:{gr+2*h+1}]"
            t1 = f"v[{tb+4*h}:{tb+4*h+1}]"
            e(f"v_pk_mul_f32 {t1}, {g}, {g}")
            e(f"v_pk_fma_f32 {t1}, {t1}, v[{KB_}:{KB_+1}], v[{KA_}:{KA_+1}]")
            e(f"v_pk_mul_f32 {t1}, {t1}, {g}")
        for h in range(2):
            for x in range(2):
                e(f"v_exp_f32 v{tb+4*h+x}, v{tb+4*h+x}")
        for h in range(2):
            e(f"v_pk_mul_f32 v[{tb+4*h+2}:{tb+4*h+3}], v[{gr+2*h}:{gr+2*h+1}], v[{ur+2*h}:{ur+2*h+1}]")
            e(f"v_pk_add_f32 v[{tb+4*h}:{tb+4*h+1}], v[{tb+4*h}:{tb+4*h+1}], 1.0 op_sel_hi:[1,0]")
        for h in range(2):
            for x in range(2):
                e(f"v_rcp_f32 v{tb+4*h+x}, v{tb+4*h+x}")
        for h in range(2):
            e(f"v_pk_mul_f32 v[{tb+4*h}:{tb+4*h+1}], v[{tb+4*h}:{tb+4*h+1}], v[{tb+4*h+2}:{tb+4*h+3}]")
        for h in range(2):
            e(f"v_cvt_pk_bf16_f32 v{outr+h}, v{tb+4*h}, v{tb+4*h+1}")

    A_ = lambda b, t: ACC + (b * 4 + t) * 4
    OA, OBB, OC = 208, 224, 232
    n = 0
    for t in range(4):
        for p in range(2):
            scale(A_(p, t), t); scale(A_(3 + p, t), t)
            geglu(A_(p, t), A_(3 + p, t), OA + 4 * t + 2 * p, T + 8 * (n % 3)); n += 1
        e(f"s_add_u32 s37, s36, {t * 56 * 1024}")
        e(f"buffer_store_dwordx4 v[{OA+4*t}:{OA+4*t+3}], v1, s[4:7], s37 offen{SC1}")
    for t in range(4):
        scale(A_(2, t), t); scale(A_(5, t), t)
        geglu(A_(2, t), A_(5, t), OBB + 4 * (t // 2) + 2 * (t % 2), T + 8 * (n % 3)); n += 1
        if t % 2 == 1:
            o = OBB + 4 * (t // 2)
            e(f"v_permlane32_swap_b32 v{o}, v{o+2}")
            e(f"v_permlane32_swap_b32 v{o+1}, v{o+3}")
            e(f"s_add_u32 s37, s36, {(t - 1) * 56 * 1024}")
            e(f"buffer_store_dwordx4 v[{o}:{o+3}], v8, s[4:7], s37 offen offset:1024{SC1}")
    for t in range(4):
        scale(A_(6, t), t)
    for t0 in (0, 2):
        for r in range(4):
            e(f"v_permlane32_swap_b32 v{A_(6, t0)+r}, v{A_(6, t0+1)+r}")
        geglu(A_(6, t0), A_(6, t0 + 1), OC + t0, T + 8 * (n % 3)); n += 1
    e(f"v_permlane16_swap_b32 v{OC}, v{OC+2}")
    e(f"v_permlane16_swap_b32 v{OC+1}, v{OC+3}")
    e(f"buffer_store_dwordx4 v[{OC}:{OC+3}], v9, s[4:7], s36 offen offset:1536{SC1}")
    stamp(a, "p3 stored")


def c_phase4(a, label, bar):
    NI, D = 28, 7
    ACC, FR, TK, AD, RB = 16, 48, 176, 236, 248
    gemm22_setup(a)
    a("v_bfe_u32 v12, v4, 2, 2")
    a("v_lshl_add_u32 v13, v5, 3, v12")
    a("v_lshlrev_b32 v13, 7, v13")
    a("v_and_b32 v14, 3, v4")
    a("v_lshl_add_u32 v13, v14, 3, v13")
    a("s_lshl_b32 s36, s31, 12")
    a("v_add_u32 v13, s36, v13")
    a("v_lshrrev_b32 v12, 1, v12")
    a("v_and_b32 v14, 1, v5")
    a("v_lshl_add_u32 v12, v14, 1, v12")
    for b in range(4):
        a(f"v_xor_b32 v14, {b}, v12")
        a(f"v_lshl_add_u32 v{AD+b}, v14, 5, v13")
        a(f"v_add_u32 v{AD+4+b}, 65536, v{AD+b}")
        a(f"v_add_u32 v{AD+8+b}, 131072, v{AD+b}")

    def rd(i):
        pos = (i % 20) * 8192
        base = AD + 4 * (pos // 65536)
        off = pos % 65536
        dst = FR + (i % 8) * 16
        return [f"ds_read_b64_tr_b16 v[{dst+4*b+2*h}:{dst+4*b+2*h+1}], v{base+b} offset:{off + h*512}"
                for b in range(4) for h in range(2)]
    bar(a, "L3")
    for i in range(8):
        for x in rd(i):
            a(x)
    a("s_waitcnt vmcnt(0)")
    stamp(a, "p3 drained")
    for i in range(32):
        a(f"v_mov_b32 v{ACC+i}, 0")
    srd(a, 20, 78, 2048 * 1024)
    a("v_lshlrev_b32 v7, 10, v6")
    a("v_lshl_add_u32 v7, v5, 3, v7")
    a("s_lshl_b32 s32, s29, 14")
    a("s_lshl_b32 s35, s93, 7")
    a("s_add_u32 s32, s32, s35")
    a("s_lshl_b32 s35, s29, 14")
    a("s_lshl_b32 s36, s93, 11")
    a("s_add_u32 s35, s35, s36")
    a(f"s_add_u32 s35, s35, {WS_H}")
    a("s_lshl_b32 s37, s31, 10")
    a(f"s_add_u32 s37, s37, {WS_ACT}")
    a(f"s_mul_i32 s33, s33, {56 * 1024}")
    a(f"s_mul_i32 s34, s34, {56 * 1024}")
    a("s_add_u32 s33, s33, s37")
    a("s_add_u32 s34, s34, s37")
    a("s_waitcnt lgkmcnt(0)")
    bar(a, "S3")
    for hh in range(2):
        a(f"buffer_load_dwordx4 v[{RB+4*hh}:{RB+4*hh+3}], v1, s[4:7], s35 offen offset:{hh*1024}{SC1}")
    bar(a, "F3")
    stamp(a, "p4 flags ok")
    vm = VM()

    def tok(i):
        out = []
        for t in range(2):
            r = TK + 8 * (i % D) + 4 * t
            pre = f"s_add_u32 s{33+t}, s{33+t}, 4096\n" if (i % 2 == 0 and i) else ""
            out.append(pre + f"buffer_load_dwordx4 v[{r}:{r+3}], v1, s[4:7], s{33+t} offen offset:{(i % 2) * 2048}{SC1}")
        return out
    for i in range(D):
        for x in tok(i):
            a(x); vm.add(i)
    for i in range(NI):
        if i >= 8:
            a("s_waitcnt lgkmcnt(8)" if i + 8 <= NI else "s_waitcnt lgkmcnt(0)")
        vm.wait_for(a, lambda t: t <= i)
        if i == 0:
            stamp(a, "p4 first data")
        if i == 8:
            bar(a, "M4")
        M = []
        for b in range(4):
            for t in range(2):
                acc = ACC + 16 * t + 4 * b
                fr = FR + (i % 8) * 16 + 4 * b
                r = TK + 8 * (i % D) + 4 * t
                M.append(f"v_mfma_f32_16x16x32_bf16 v[{acc}:{acc+3}], v[{fr}:{fr+3}], v[{r}:{r+3}], v[{acc}:{acc+3}]")
        side = []
        if i + 8 < NI:
            side += [(2 * (k // 2) + 1, x) for k, x in enumerate(rd(i + 8))]
        if i + D < NI:
            side += [(7, x) for x in tok(i + D)]
            vm.add(i + D); vm.add(i + D)
        interleave(a, M, side)
    stamp(a, "p4 loop done")
    bar(a, "Q4")
    gemm22_reduce(a, bar, "R4", ACC, 0)
    TMP = 48
    for b in range(4):
        for r in range(4):
            d = RB + 2 * b + r // 2
            if r % 2 == 0:
                a(f"v_lshlrev_b32 v{TMP+(b*4+r)}, 16, v{d}")
            else:
                a(f"v_and_b32 v{TMP+(b*4+r)}, 0xffff0000, v{d}")
    for i in range(8):
        a(f"v_pk_add_f32 v[{ACC+2*i}:{ACC+2*i+1}], v[{ACC+2*i}:{ACC+2*i+1}], v[{TMP+2*i}:{TMP+2*i+1}]")
    a("s_waitcnt lgkmcnt(0)")
    for i in range(8):
        a(f"v_pk_add_f32 v[{ACC+2*i}:{ACC+2*i+1}], v[{ACC+2*i}:{ACC+2*i+1}], v[{ACC+16+2*i}:{ACC+16+2*i+1}]")
    OB = 64
    for i in range(8):
        a(f"v_cvt_pk_bf16_f32 v{OB+i}, v{ACC+2*i}, v{ACC+2*i+1}")
    for b in range(4):
        a(f"buffer_store_dwordx2 v[{OB+2*b}:{OB+2*b+1}], v7, s[20:23], s32 offen offset:{b*32}")


def mega(label):
    a = Asm()
    common(a, label)
    bc, bh = Bars(), Bars()
    c_phase1(a, label, bc)
    c_phase2(a, label, bc)
    c_phase3(a, label, bc)
    c_phase4(a, label, bc)
    if TIMESTAMPS:
        a("s_waitcnt vmcnt(0)")
        stamp(a, "end")
        a("s_cmp_lg_u32 s26, 0")
        a(f"s_cbranch_scc1 L_end_{label}")
        if "dbgts" in EXP:
            a("s_cmp_lg_u32 s2, 133")
            a(f"s_cbranch_scc1 L_end_{label}")
            a("v_readlane_b32 s92, v2, 0")
            srd(a, 20, 80, 256)
            a("v_subrev_u32 v252, s92, v2")
            a("v_lshlrev_b32 v251, 2, v4")
            a("v_subrev_u32 v251, 12, v251")
            a(f"s_mov_b64 exec, {hex(((1 << 19) - 1) & ~15)}")
            a("buffer_store_dword v252, v251, s[20:23], 0 offen")
            a("s_endpgm")
        a("v_readlane_b32 s92, v2, 0")
        a("v_readlane_b32 s93, v3, 0")
        a("v_mov_b32 v252, s92\nv_mov_b32 v253, s93\nv_mov_b32 v254, v2\nv_mov_b32 v255, v3")
        a("v_lshlrev_b32 v251, 12, v4")
        a("s_lshl_b32 s92, s2, 4")
        a(f"s_add_u32 s92, s92, {WS_TS}")
        a(f"s_mov_b64 exec, {(1 << len(STAMPS)) - 1}")
        a("buffer_store_dwordx4 v[252:255], v251, s[4:7], s92 offen")
        print("stamps:", list(enumerate(STAMPS)))
    a.label(f"L_end_{label}")
    a("s_endpgm")
    helper(a, label, bh)
    assert bc.seq == bh.seq, (bc.seq, bh.seq)
    return a


def build(fn):
    label = f"{NAME}_kernel"
    a = mega(label)
    o = open(f"cdna_kernels/{NAME}.s.ref").read().split("; Override launch")[0].rstrip("\n").split("\n")
    o.append("; @launch grid=(256,1,1) block=(512,1,1) lds=163840")
    o += ['.amdgcn_target "amdgcn-amd-amdhsa--gfx950"', ".text",
          f".globl {label}", ".p2align 8", f".type {label},@function", f"{label}:"]
    o += a.lines
    o += ['.section .rodata,"a"', ".p2align 6", f".amdhsa_kernel {label}",
          "  .amdhsa_next_free_vgpr 256", "  .amdhsa_next_free_sgpr 102", "  .amdhsa_accum_offset 256",
          "  .amdhsa_group_segment_fixed_size 0", "  .amdhsa_kernarg_size 80", "  .amdhsa_user_sgpr_count 2",
          "  .amdhsa_user_sgpr_kernarg_segment_ptr 1", "  .amdhsa_system_sgpr_workgroup_id_x 1",
          ".end_amdhsa_kernel"]
    open(fn, "w").write("\n".join(o) + "\n")


if __name__ == "__main__":
    import argparse
    ap = argparse.ArgumentParser()
    ap.add_argument("--ts", action="store_true")
    ap.add_argument("--exp", default="")
    ap.add_argument("-o", default=f"cdna_kernels/{NAME}.s")
    args = ap.parse_args()
    TIMESTAMPS = args.ts
    EXP = set(args.exp.split(",")) if args.exp else set()
    for e in EXP:
        if e.startswith("warmat"): WARM_AT = int(e[6:])
    build(args.o)
```

```python
import sys, math, struct
sys.path.insert(0, "tools")
from dsl import Asm

NAME = "sequential_preLN__sliding_local_dilated__geglu_ffn__prompt"
WS_O = 0
WS_H = 2 << 20
WS_ACT = 4 << 20
WS_STATS = 12 << 20
WS_FLAG = 13 << 20
WS_TS = 128 << 20
WS_SIZE = 268435456

TIMESTAMPS = False
EXP = set()
STAMPS = []
SC1 = " sc1"

P1_H, P1_RING, P1_SLOT, P1_NSLOT = 0, 16384, 28672, 5
P1_EX = 131328
P2_W = 0
P2_RED = 131328
P3_G, P3_U, P3_CS = 65552, 0, 148480
GATE_EARLY = 16
LFLAG = 163584
WARM_AT = 7


def f2h(x):
    return "0x%08x" % struct.unpack("<I", struct.pack("<f", x))[0]


def srd(a, r, src, size):
    a(f"s_mov_b32 s{r}, s{src}")
    a(f"s_and_b32 s{r+1}, s{src+1}, 0xffff")
    a(f"s_mov_b32 s{r+2}, {size}")
    a(f"s_mov_b32 s{r+3}, 0x00020000")


def stamp(a, name):
    if not TIMESTAMPS:
        return
    if name in STAMPS:
        i = STAMPS.index(name)
    else:
        i = len(STAMPS); STAMPS.append(name)
    a("s_memtime s[96:97]" if "cyc" in EXP else "s_memrealtime s[96:97]")
    a("s_waitcnt lgkmcnt(0)")
    a(f"v_writelane_b32 v2, s96, {i}")
    a(f"v_writelane_b32 v3, s97, {i}")


def interleave(a, main, side):
    ext = {}
    for pos, t in side:
        ext.setdefault(min(pos, len(main) - 1), []).append(t)
    for t in ext.get(-1, []):
        a(t)
    for i, m in enumerate(main):
        a(m)
        for t in ext.get(i, []):
            a(t)


def spread(items, start, end):
    n = len(items)
    return [(start + (i * (end - start)) // max(n, 1), t) for i, t in enumerate(items)]


class VM:
    def __init__(self):
        self.order = []

    def add(self, tag):
        self.order.append(tag)

    def wait_for(self, a, pred):
        idx = [i for i, t in enumerate(self.order) if pred(t)]
        if not idx:
            return
        n = len(self.order) - 1 - max(idx)
        a(f"s_waitcnt vmcnt({min(n, 63)})")


class Bars:
    def __init__(self):
        self.seq = []

    def __call__(self, a, name):
        self.seq.append(name)
        a("s_barrier")


def common(a, label):
    stamp(a, "start")
    a("s_load_dwordx16 s[64:79], s[0:1], 0")
    a("s_load_dwordx4 s[80:83], s[0:1], 64")
    a("s_cmp_ge_u32 s2, 256")
    a(f"s_cbranch_scc1 L_end_{label}")
    a("s_and_b32 s24, s2, 7")
    a("s_lshr_b32 s25, s2, 3")
    a("v_lshrrev_b32 v7, 6, v0")
    a("v_and_b32 v4, 63, v0")
    a("v_readfirstlane_b32 s26, v7")
    a("v_lshlrev_b32 v1, 4, v4")
    a("v_lshrrev_b32 v5, 4, v4")
    a("v_and_b32 v6, 15, v4")
    a("s_memrealtime s[90:91]")
    a("s_and_b32 s27, s26, 3")
    a("s_lshr_b32 s28, s25, 3")
    a("s_and_b32 s93, s25, 7")
    a("s_lshr_b32 s29, s24, 1")
    a("s_lshl_b32 s29, s29, 2")
    a("s_add_u32 s29, s29, s28")
    a("s_and_b32 s43, s24, 1")
    a("s_lshl_b32 s43, s43, 3")
    a("s_add_u32 s43, s43, s93")
    a("v_lshlrev_b32 v7, 2, v4")
    a(f"v_add_u32 v7, {LFLAG}, v7")
    a("v_mov_b32 v8, 0")
    a("ds_write_b32 v7, v8")
    a("s_cmp_ge_u32 s26, 4")
    a(f"s_cbranch_scc1 L_{label}_helper")


def place_from(a, sreg):
    a(f"s_and_b32 s24, s{sreg}, 7")
    a(f"s_bfe_u32 s25, s{sreg}, 0x50008")
    a("s_lshr_b32 s28, s25, 3")
    a("s_and_b32 s93, s25, 7")
    a("s_lshl_b32 s92, s24, 2")
    a("s_add_u32 s92, s92, s28")
    a("s_and_b32 s94, s24, 4")
    a("s_add_u32 s94, s94, s28")
    a("s_and_b32 s95, s24, 3")
    a("s_lshl_b32 s95, s95, 3")
    a("s_add_u32 s95, s95, s93")


def flag_store(a, label, phase, tile_sreg):
    a("s_cmp_lg_u32 s26, 4")
    a(f"s_cbranch_scc1 L_{label}_sig{phase}")
    a(f"s_lshl_b32 s40, s{tile_sreg}, 7")
    a(f"s_add_u32 s40, s40, {WS_FLAG + (phase - 1) * 32768}")
    a("v_mov_b32 v8, s88")
    a("v_mov_b32 v9, 0")
    a("s_mov_b64 exec, 1")
    a("buffer_store_dword v8, v9, s[4:7], s40 offen sc1")
    a("s_mov_b64 exec, -1")
    a.label(f"L_{label}_sig{phase}")


def flag_poll(a, label, phase, first_sreg, n):
    a("s_cmp_lg_u32 s26, 4")
    a(f"s_cbranch_scc1 L_{label}_wt{phase}")
    a("s_mov_b32 s40, 0")
    a("v_lshlrev_b32 v8, 7, v4")
    a(f"s_lshl_b32 s41, s{first_sreg}, 7")
    a(f"s_add_u32 s41, s41, {WS_FLAG + (phase - 1) * 32768}")
    a(f"s_mov_b64 exec, {hex((1 << n) - 1)}")
    a.label(f"L_{label}_pl{phase}")
    a("buffer_load_dword v9, v8, s[4:7], s41 offen sc1")
    a("s_add_u32 s40, s40, 1")
    a("s_waitcnt vmcnt(0)")
    a("v_cmp_ne_u32 vcc, s88, v9")
    a("s_cmp_gt_u32 s40, 0x40000")
    a(f"s_cbranch_scc1 L_{label}_px{phase}")
    a(f"s_cbranch_vccnz L_{label}_pl{phase}")
    a.label(f"L_{label}_px{phase}")
    if phase < 3:
        a("s_mov_b64 exec, 1")
        a(f"ds_write_b32 v31, v19 offset:{64 + 4*phase}")
    a("s_mov_b64 exec, -1")
    a.label(f"L_{label}_wt{phase}")


def wait_lds(a, name, areg, treg, off, val=1):
    a.label(name)
    a(f"ds_read_b32 v{treg}, v{areg} offset:{off}")
    a("s_waitcnt lgkmcnt(0)")
    a(f"v_readfirstlane_b32 s40, v{treg}")
    a(f"s_cmp_lt_u32 s40, {val}")
    a(f"s_cbranch_scc1 {name}")


def helper(a, label, bar):
    a.label(f"L_{label}_helper")
    NSLOT = P1_NSLOT
    a("v_lshrrev_b32 v8, 3, v4")
    a("v_and_b32 v7, 7, v4")
    a("v_xor_b32 v7, v7, v8")
    a("v_lshlrev_b32 v8, 10, v8")
    a("v_lshl_add_u32 v20, v7, 4, v8")
    for j in range(3):
        a(f"v_add_u32 v12, {64*j}, v4")
        a("v_mul_u32_u24 v13, 43691, v12")
        a("v_lshrrev_b32 v13, 19, v13")
        a("v_mul_u32_u24 v14, 12, v13")
        a("v_sub_u32 v14, v12, v14")
        a("v_lshrrev_b32 v15, 1, v14")
        a("v_bfe_u32 v16, v13, 3, 1")
        a("v_sub_u32 v15, v15, v16")
        a("v_add_u32 v16, 6, v15")
        a("v_min_u32 v15, v15, v16")
        a("v_lshrrev_b32 v16, 1, v15")
        a("v_lshlrev_b32 v16, 10, v16")
        a("v_and_b32 v15, 1, v15")
        a("v_lshl_add_u32 v16, v15, 5, v16")
        a("v_and_b32 v14, 1, v14")
        a("v_lshl_add_u32 v16, v14, 4, v16")
        a("v_mul_u32_u24 v13, 3072, v13")
        a(f"v_add_u32 v{21+j}, v13, v16")
    if "rot4" in EXP:
        a("s_and_b32 s42, s25, 3"); a("s_lshl_b32 s42, s42, 1"); a("s_add_u32 s42, s42, s24")
    elif "rot2" in EXP:
        a("s_and_b32 s42, s25, 1"); a("s_lshl_b32 s42, s42, 2"); a("s_add_u32 s42, s42, s24")
    elif "rot8" in EXP:
        a("s_add_u32 s42, s29, s43")
    elif "rotm" in EXP:
        a("s_lshr_b32 s42, s25, 3"); a("s_lshl_b32 s42, s42, 1"); a("s_add_u32 s42, s42, s24")
    elif "rotx" in EXP:
        a("s_mov_b32 s42, s24")
    else:
        a("s_add_u32 s42, s29, s43")
    a("s_and_b32 s42, s42, 7")
    a("s_lshl_b32 s30, s27, 2")
    a("s_lshl_b32 s31, s42, 3")
    for i in range(4):
        a(f"s_add_u32 s32, s30, {i}")
        a("v_xor_b32 v12, s32, v4")
        a("v_add_u32 v12, s31, v12")
        a("v_and_b32 v12, 63, v12")
        a(f"v_lshlrev_b32 v{24+i}, 4, v12")
    a("s_lshl_b32 s30, s29, 17")
    a("s_lshl_b32 s31, s27, 15")
    a("s_add_u32 s31, s31, s30")
    a("s_lshl_b32 s32, s27, 12")
    a("s_add_u32 s32, s32, s30")
    a("s_sub_u32 s32, s32, 16384")
    a(f"s_mul_i32 s33, s27, {16 * 3072}")
    a("s_lshl_b32 s34, s43, 6")
    a("s_add_u32 s33, s33, s34")
    a("s_lshl_b32 s35, s27, 12")
    a(f"s_add_u32 s35, s35, {P1_RING}")
    a("s_mul_i32 s36, s27, 3072")
    a(f"s_add_u32 s36, s36, {P1_RING + 16384}")
    a("s_lshl_b32 s37, s27, 12")
    a(f"s_add_u32 s37, s37, {P1_H}")
    for c in range(8):
        a(f"s_add_u32 s{48+c}, s42, {c}")
        a(f"s_and_b32 s{48+c}, s{48+c}, 7")
    a("s_waitcnt lgkmcnt(0)")
    srd(a, 4, 82, WS_SIZE)
    srd(a, 8, 64, 2048 * 1024)
    srd(a, 16, 66, 512 * 3072)
    vm = VM()

    def issue_w(c):
        a(f"s_mul_i32 s38, s{48+c}, {64 * 3072}")
        a("s_add_u32 s38, s38, s33")
        for j in range(3):
            a(f"s_add_u32 m0, s36, {(c % NSLOT) * P1_SLOT + j * 1024}")
            a(f"buffer_load_dwordx4 v{21+j}, s[16:19], s38 offen lds")
            vm.add(("w", c))

    def issue_t(c):
        a(f"s_lshl_b32 s39, s{48+c}, 7")
        a("s_add_u32 s39, s39, s31")
        a(f"s_add_u32 m0, s35, {(c % NSLOT) * P1_SLOT}")
        for i in range(4):
            if i:
                a(f"s_add_u32 s39, s39, {8192 - 1024}")
            a(f"buffer_load_dwordx4 v20, s[8:11], s39 offen offset:{i*1024} lds")
            vm.add(("t", c))

    issue_w(0); issue_t(0)
    a("s_mov_b32 m0, s37")
    for i in range(4):
        a(f"buffer_load_dwordx4 v{24+i}, s[8:11], s32 offen offset:{i*1024} lds")
        vm.add(("h", 0))
    issue_w(1); issue_t(1)
    if "tlb" in EXP:
        a("v_lshlrev_b32 v40, 18, v4")
        a("v_lshlrev_b32 v41, 15, v4")
        a("s_cmp_lg_u32 s27, 0")
        a(f"s_cbranch_scc1 L_{label}_tl1")
        a("buffer_load_dword v42, v40, s[4:7], 0 offen sc1")
        srd(a, 56, 78, 2048 * 1024)
        a("buffer_load_dword v43, v41, s[56:59], 0 offen")
        a.label(f"L_{label}_tl1")
        a("s_cmp_lg_u32 s27, 1")
        a(f"s_cbranch_scc1 L_{label}_tl2")
        srd(a, 56, 68, 512 * 1024)
        a("buffer_load_dword v42, v41, s[56:59], 0 offen")
        srd(a, 56, 72, 512 * 3584)
        a("buffer_load_dword v43, v41, s[56:59], 0 offen")
        a.label(f"L_{label}_tl2")
        a("s_cmp_lg_u32 s27, 2")
        a(f"s_cbranch_scc1 L_{label}_tl3")
        srd(a, 56, 74, 512 * 3584)
        a("buffer_load_dword v42, v41, s[56:59], 0 offen")
        srd(a, 56, 76, 1792 * 1024)
        a("buffer_load_dword v43, v41, s[56:59], 0 offen")
        a.label(f"L_{label}_tl3")
        a("s_cmp_lg_u32 s27, 3")
        a(f"s_cbranch_scc1 L_{label}_tl4")
        a("buffer_load_dword v42, v41, s[8:11], 0 offen")
        a("buffer_load_dword v43, v41, s[16:19], 0 offen")
        a.label(f"L_{label}_tl4")
        vm.add(("tl", 0)); vm.add(("tl", 0))
    a("s_lshl_b32 s40, s2, 3")
    a("s_add_u32 s40, s40, s26")
    srd(a, 20, 80, 256)
    a("s_cmp_lg_u32 s40, 7")
    a(f"s_cbranch_scc1 L_{label}_noep")
    a("s_max_u32 s90, s90, 1")
    a("v_mov_b32 v17, s90")
    a("v_mov_b32 v18, 0")
    a("s_mov_b64 exec, 1")
    a("buffer_store_dword v17, v18, s[20:23], 0 offen sc1")
    a("s_mov_b64 exec, -1")
    a("s_waitcnt vmcnt(0)")
    a.label(f"L_{label}_noep")
    a(f"v_mov_b32 v31, {LFLAG}")
    a("v_mov_b32 v19, 1")
    a("s_waitcnt lgkmcnt(0)")
    bar(a, "Z")
    a("s_getreg_b32 s62, hwreg(HW_REG_XCC_ID)")
    a("s_and_b32 s62, s62, 7")
    a("v_mov_b32 v18, 0")
    a("v_mov_b32 v38, 1")
    a("s_lshl_b32 s63, s62, 5")
    a("s_cmp_eq_u32 s26, 4")
    a("s_cselect_b32 s63, s63, 0x1000")
    a("s_mov_b64 exec, 1")
    a("buffer_atomic_add v38, v18, s[20:23], s63 offen offset:8 sc0 sc1")
    a("s_mov_b64 exec, -1")
    vm.add(("tk", 0))

    def landed(c):
        vm.wait_for(a, lambda t: (t[0] in ("w", "t") and t[1] <= c) or t[0] == "h")
        a("s_mov_b64 exec, 1")
        a(f"ds_add_u32 v31, v19 offset:{4*c}")
        a("s_mov_b64 exec, -1")

    def wait_consumed(c):
        a.label(f"L_{label}_hc{c}")
        a(f"ds_read_b32 v17, v31 offset:{32 + 4*c}")
        a("s_waitcnt lgkmcnt(0)")
        a("v_readfirstlane_b32 s40, v17")
        a("s_cmp_lt_u32 s40, 4")
        a(f"s_cbranch_scc1 L_{label}_hc{c}")
    for op in "L0 I2 L1 I3 I4 L2 C0 I5 L3 C1 I6 L4 C2 I7 L5 L6 L7".split():
        c = int(op[1])
        if op[0] == "L":
            landed(c)
        elif op[0] == "C":
            wait_consumed(c)
        else:
            issue_w(c); issue_t(c)
    a("s_cmp_lg_u32 s26, 4")
    a(f"s_cbranch_scc1 L_{label}_tkw")
    a.label(f"L_{label}_tk")
    a("v_readfirstlane_b32 s63, v38")
    a("s_cmp_lt_u32 s63, 32")
    a(f"s_cbranch_scc1 L_{label}_tkok")
    a("s_add_u32 s62, s62, 1")
    a("s_and_b32 s62, s62, 7")
    a("s_lshl_b32 s63, s62, 5")
    a("v_mov_b32 v38, 1")
    a("s_mov_b64 exec, 1")
    a("buffer_atomic_add v38, v18, s[20:23], s63 offen offset:8 sc0 sc1")
    a("s_mov_b64 exec, -1")
    a("s_waitcnt vmcnt(0)")
    a(f"s_branch L_{label}_tk")
    a.label(f"L_{label}_tkok")
    a("s_lshl_b32 s63, s63, 8")
    a("s_or_b32 s63, s63, s62")
    a("s_or_b32 s63, s63, 0x10000")
    a("v_mov_b32 v17, s63")
    a("s_mov_b64 exec, 1")
    a("ds_write_b32 v31, v17 offset:128")
    a("s_mov_b64 exec, -1")
    a.label(f"L_{label}_tkw")
    wait_lds(a, f"L_{label}_tkp", 31, 17, 128)
    place_from(a, 40)
    a("v_and_b32 v7, 7, v4")
    a("v_lshlrev_b32 v8, 1, v5")
    a("v_xor_b32 v7, v7, v8")
    a("v_lshrrev_b32 v8, 3, v4")
    a("v_lshlrev_b32 v9, 10, v8")
    a("v_lshl_add_u32 v28, v7, 4, v9")
    a("v_mul_u32_u24 v9, 3584, v8")
    a("v_lshl_add_u32 v29, v7, 4, v9")
    a("s_lshl_b32 s44, s27, 13")
    a("s_lshl_b32 s45, s93, 7")
    a("s_add_u32 s44, s44, s45")
    a(f"s_mul_i32 s45, s27, {8 * 3584}")
    a("s_mul_i32 s46, s95, 112")
    a("s_add_u32 s45, s45, s46")
    a("s_lshl_b32 s46, s27, 10")
    srd(a, 12, 68, 512 * 1024)
    a("s_cmp_lt_u32 s27, 2")
    a("s_cselect_b32 s56, s72, s74")
    a("s_cselect_b32 s57, s73, s75")
    a("s_and_b32 s57, s57, 0xffff")
    a(f"s_mov_b32 s58, {512*3584}")
    a("s_mov_b32 s59, 0x00020000")
    a("s_lshl_b32 s60, s25, 4")
    a("s_and_b32 s61, s27, 1")
    a("s_lshl_b32 s61, s61, 3")
    a("s_add_u32 s60, s60, s61")
    a("s_mul_i32 s60, s60, 3584")
    a("s_and_b32 s61, s24, 3")
    a("s_mul_i32 s61, s61, 896")
    a("s_add_u32 s60, s60, s61")
    a("s_lshl_b32 s61, s25, 14")
    a("s_lshl_b32 s47, s27, 12")
    a("s_add_u32 s61, s61, s47")
    warm = [f"buffer_load_dwordx4 v[{64+4*i}:{64+4*i+3}], v1, s[12:15], s61 offen offset:{i * 1024}" for i in range(4)]
    warm += [f"s_add_u32 s47, s60, {i * 3584}\nbuffer_load_dwordx4 v[{80+4*i}:{80+4*i+3}], v1, s[56:59], s47 offen" for i in range(8)]
    if "nopf" in EXP:
        warm = []
    for x in warm:
        a(x); vm.add(("pf", 0))
    a("v_mov_b32 v18, 0")
    a("buffer_load_dword v30, v18, s[20:23], 0 offen sc1")
    vm.add(("ep", 0))
    srd(a, 16, 72, 512 * 3584)

    def p2_w_dma(i):
        a(f"s_add_u32 m0, s46, {P2_W + i * 4096}")
        a(f"s_add_u32 s47, s44, {32 * i * 1024}")
        a("buffer_load_dwordx4 v28, s[12:15], s47 offen lds")
        vm.add(("w2", i))

    def p3_w_dma(img, i, sr):
        a(f"s_add_u32 m0, s46, {img + i * 4096}")
        a(f"s_add_u32 s47, s45, {32 * i * 3584}")
        a(f"buffer_load_dwordx4 v29, s[{sr}:{sr+3}], s47 offen lds")
        vm.add(("w3", i))
    bar(a, "A1")
    for i in range(16):
        p2_w_dma(i)
    for i in range(GATE_EARLY):
        p3_w_dma(P3_G, i, 16)
    vm.wait_for(a, lambda t: t[0] == "w2")
    a("v_readfirstlane_b32 s88, v30")
    a("s_cmp_lg_u32 s88, 0")
    a(f"s_cbranch_scc1 L_{label}_epx")
    a("s_mov_b32 s40, 0")
    a.label(f"L_{label}_ep")
    a("buffer_load_dword v30, v18, s[20:23], 0 offen sc1")
    a("s_add_u32 s40, s40, 1")
    a("s_waitcnt vmcnt(0)")
    a("v_readfirstlane_b32 s88, v30")
    a("s_cmp_gt_u32 s40, 0x40000")
    a(f"s_cbranch_scc1 L_{label}_epx")
    a("s_cmp_eq_u32 s88, 0")
    a(f"s_cbranch_scc1 L_{label}_ep")
    a.label(f"L_{label}_epx")
    a("s_lshl_b32 s89, s29, 4")
    a("s_add_u32 s89, s89, s43")
    srd(a, 12, 74, 512 * 3584)
    bar(a, "L1")
    for i in range(GATE_EARLY, 16):
        p3_w_dma(P3_G, i, 16)
    bar(a, "S1")
    flag_store(a, label, 1, 89)
    a("s_cmp_eq_u32 s26, 4")
    a(f"s_cbranch_scc1 L_{label}_noups")
    a(f"s_sub_u32 s37, s45, {8 * 3584}")
    a("s_sub_u32 s38, s46, 1024")
    for i in range(22):
        if i == 21:
            a("s_cmp_lg_u32 s26, 5")
            a(f"s_cbranch_scc1 L_{label}_noups")
        a(f"s_add_u32 m0, s38, {P3_U + i * 3072}")
        a(f"s_add_u32 s47, s37, {24 * i * 3584}")
        a("buffer_load_dwordx4 v29, s[12:15], s47 offen lds")
    a.label(f"L_{label}_noups")
    a("s_lshr_b32 s89, s92, 1")
    a("s_lshl_b32 s89, s89, 4")
    flag_poll(a, label, 1, 89, 16)
    a("s_waitcnt vmcnt(0)")
    bar(a, "R2")
    srd(a, 12, 76, 1792 * 1024)
    a("v_lshrrev_b32 v12, 3, v4")
    a("v_and_b32 v13, 7, v4")
    a("v_and_b32 v14, 1, v5")
    a("v_lshlrev_b32 v14, 1, v14")
    a("s_and_b32 s44, s27, 1")
    a("s_lshl_b32 s44, s44, 2")
    a("v_xor_b32 v13, v13, v14")
    a("v_xor_b32 v13, s44, v13")
    a("v_lshlrev_b32 v13, 4, v13")
    a("v_lshrrev_b32 v14, 2, v12")
    a("v_lshl_add_u32 v36, v12, 10, v13")
    a("v_lshl_add_u32 v34, v14, 12, v36")
    a("v_mul_u32_u24 v14, 12288, v14")
    a("v_add_u32 v32, v14, v36")
    a("v_xor_b32 v33, 64, v32")
    a("v_xor_b32 v35, 64, v34")
    a("v_xor_b32 v37, 64, v36")
    a("s_lshl_b32 s45, s93, 7")
    a(f"s_mul_i32 s46, s27, {56 * 1024}")
    a("s_add_u32 s45, s45, s46")
    a(f"s_mul_i32 s46, s27, {7 * 1024}")
    a("s_lshl_b32 s89, s92, 3")
    a("s_add_u32 s89, s89, s93")
    bar(a, "S2")
    flag_store(a, label, 2, 89)
    a("s_lshl_b32 s89, s94, 5")
    flag_poll(a, label, 2, 89, 32)
    wait_lds(a, f"L_{label}_hf2", 31, 17, 64 + 8)
    if "nohw" not in EXP:
        a("s_lshl_b32 s40, s94, 18")
        a("s_lshl_b32 s41, s27, 16")
        a("s_add_u32 s40, s40, s41")
        a("s_lshl_b32 s41, s93, 11")
        a("s_add_u32 s40, s40, s41")
        a(f"s_add_u32 s40, s40, {WS_H}")
        for t in range(4):
            for q in range(2):
                a(f"s_add_u32 s41, s40, {t * 16384}")
                a(f"buffer_load_dwordx4 v[{128+8*t+4*q}:{128+8*t+4*q+3}], v1, s[4:7], s41 offen offset:{q*1024}{SC1}")
    if "nopf" not in EXP:
        a("s_sleep 32")
        a(f"s_mul_i32 s40, s25, {56 * 1024}")
        a(f"s_mul_i32 s41, s27, {14 * 1024}")
        a("s_add_u32 s40, s40, s41")
        for i in range(14):
            a(f"s_add_u32 s41, s40, {i * 1024}")
            a(f"buffer_load_dwordx4 v[{64+4*i}:{64+4*i+3}], v1, s[12:15], s41 offen")
            a("s_sleep 4")
    a("s_lshl_b32 s89, s94, 5")
    a("s_add_u32 s89, s89, s95")
    bar(a, "A3")

    def p4_w_dma(i):
        m, j = i // 7, i % 7
        rowbase = 4 * j if j < 4 else (32 + 4 * (j - 4) if j < 6 else 48)
        vreg = 32 + (j % 2) if j < 4 else (34 + (j % 2) if j < 6 else 36)
        a(f"s_add_u32 m0, s46, {(28 * m + j) * 1024}")
        a(f"s_add_u32 s47, s45, {(224 * m + rowbase) * 1024}")
        a(f"buffer_load_dwordx4 v{vreg}, s[12:15], s47 offen lds")
    for i in range(35):
        p4_w_dma(i)
    a("s_waitcnt vmcnt(14)")
    bar(a, "L3")
    a("s_waitcnt vmcnt(0)")
    bar(a, "S3")
    flag_store(a, label, 3, 89)
    a("s_cmp_eq_u32 s26, 4")
    a(f"s_cbranch_scc1 L_{label}_nolate")
    for i in range(28):
        m, j = i // 7, i % 7
        rowbase = 4 * j if j < 4 else (32 + 4 * (j - 4) if j < 6 else 48)
        par = (j + m + 1) % 2
        vreg = (32 if j < 4 else (34 if j < 6 else 36)) + par
        pos = (140 + 21 * m + j - 7) * 1024
        if m == 0:
            a(f"s_add_u32 s48, s46, {pos}\ns_sub_u32 s49, s48, 163840\ns_min_u32 m0, s48, s49")
        else:
            a(f"s_add_u32 m0, s46, {pos - 163840}")
        a(f"s_add_u32 s47, s45, {(56 * (20 + 3 * m - 1) + rowbase) * 1024}")
        a(f"buffer_load_dwordx4 v{vreg}, s[12:15], s47 offen lds")
    a.label(f"L_{label}_nolate")
    a("s_lshr_b32 s89, s92, 2")
    a("s_lshl_b32 s89, s89, 5")
    flag_poll(a, label, 3, 89, 32)
    bar(a, "F3")
    a("s_waitcnt vmcnt(0)")
    bar(a, "M4")
    bar(a, "Q4")
    bar(a, "R4")
    a("s_endpgm")


def tr_addr_perm(a):
    a("v_bfe_u32 v8, v4, 2, 2")
    a("v_lshl_add_u32 v9, v5, 2, v8")
    a("v_lshlrev_b32 v9, 7, v9")
    a("v_and_b32 v10, 3, v4")
    a("v_lshrrev_b32 v8, 1, v8")
    a("v_and_b32 v11, 1, v5")
    a("v_lshl_add_u32 v8, v11, 1, v8")
    a("v_lshl_add_u32 v12, v10, 3, v9")


def c_phase1(a, label, bar):
    NSLOT = P1_NSLOT
    TA0, HA, WA = 20, 22, 26
    WB, WC, TB0, TC0 = 240, 246, 252, 254
    a("s_lshl_b32 s35, s26, 12")
    a(f"s_add_u32 s35, s35, {P1_RING}")
    a("v_and_b32 v7, 7, v6")
    a("v_xor_b32 v7, v7, v5")
    a("v_lshlrev_b32 v8, 7, v6")
    a("v_lshl_add_u32 v8, v7, 4, v8")
    a(f"v_add_u32 v{TA0}, s35, v8")
    a(f"v_xor_b32 v{TA0+1}, 64, v{TA0}")
    for c1 in range(2):
        for h in range(2):
            a(f"v_add_u32 v7, {8*c1 + 4*h}, v5")
            a("v_xor_b32 v7, v7, v6")
            a("v_lshlrev_b32 v8, 10, v6")
            a("v_lshl_add_u32 v8, v7, 4, v8")
            a(f"v_add_u32 v{HA + 2*c1 + h}, {P1_H}, v8")
    a("v_bfe_u32 v7, v4, 2, 2")
    a("v_lshl_add_u32 v7, v5, 3, v7")
    a("v_mul_u32_u24 v7, 192, v7")
    a("v_and_b32 v8, 3, v4")
    a("v_lshl_add_u32 v7, v8, 3, v7")
    a("v_and_b32 v8, 1, v5")
    for b in range(6):
        a(f"v_add_u32 v12, {b}, v8")
        if b == 5:
            a("v_mul_u32_u24 v13, 6, v8")
            a("v_sub_u32 v12, v12, v13")
        a(f"v_lshl_add_u32 v{WA+b}, v12, 5, v7")
        a(f"v_add_u32 v{WA+b}, {P1_RING + 16384}, v{WA+b}")
        a(f"v_add_u32 v{WB+b}, {2 * P1_SLOT}, v{WA+b}")
        a(f"v_add_u32 v{WC+b}, {4 * P1_SLOT}, v{WA+b}")
    for h in range(2):
        a(f"v_add_u32 v{TB0+h}, {2 * P1_SLOT}, v{TA0+h}")
        a(f"v_add_u32 v{TC0+h}, {4 * P1_SLOT}, v{TA0+h}")
    ACC, RS, SQ, HX, ONES, FW, FT = 32, 80, 88, 96, 104, 108, 156
    MC, MP, MP0 = 228, 232, 236
    for i in range(ACC, ONES):
        a(f"v_mov_b32 v{i}, 0")
    for i in range(4):
        a(f"v_mov_b32 v{ONES+i}, 0x3f803f80")
    a("v_cmp_eq_u32 s[56:57], 0, v6")
    a("v_and_b32 v7, 3, v6")
    a("v_cmp_eq_u32 s[58:59], 1, v7")
    a("v_cmp_eq_u32 s[60:61], 2, v7")
    a("v_cmp_eq_u32 s[62:63], 3, v7")
    a("v_lshrrev_b32 v8, 2, v6")
    a("v_cmp_eq_u32 s[84:85], v8, v5")
    a("v_lshlrev_b32 v14, 2, v5")
    a("v_sub_u32 v14, v6, v14")
    a("v_mov_b32 v15, 0xff800000")
    for r in range(4):
        a(f"v_subrev_u32 v16, {r}, v14")
        a("v_and_b32 v17, 0x80000001, v16")
        a("v_cmp_eq_u32 vcc, 0, v17")
        a(f"v_cndmask_b32 v{MC+r}, v15, 0, vcc")
        a("v_add_u32 v16, 1, v16")
        a("v_and_b32 v17, 0x80000001, v16")
        a("v_xor_b32 v17, 0x80000001, v17")
        a("v_cmp_eq_u32 vcc, 0, v17")
        a(f"v_cndmask_b32 v{MP+r}, v15, 0, vcc")
    a("s_cmp_eq_u32 s29, 0")
    a("s_cselect_b32 s86, 0xff800000, 0")
    for r in range(4):
        a(f"v_add_f32 v{MP0+r}, s86, v{MP+r}")
    a(f"s_mov_b32 s87, {f2h(0.25 * 1.4426950408889634)}")
    a(f"v_mov_b32 v18, {LFLAG}")
    a("v_mov_b32 v19, 1")
    a("s_waitcnt lgkmcnt(0)")
    srd(a, 4, 82, WS_SIZE)
    srd(a, 8, 64, 2048 * 1024)
    bar(a, "Z")
    for w in range(1, 4):
        a(f"s_cmp_eq_u32 s26, {w}")
        a(f"s_cbranch_scc1 L_{label}_w{w}")
    seq0 = list(bar.seq)
    for w in range(4):
        if w:
            a.label(f"L_{label}_w{w}")
        bar.seq[:] = seq0

        def reads(s):
            c, h = s // 2, s % 2
            fw = FW + 24 * (s % 2); ft = FT + 12 * (s % 2)
            slot = c % NSLOT
            ta = (TA0, TB0, TC0)[slot // 2]; wa = (WA, WB, WC)[slot // 2]
            so = (slot % 2) * P1_SLOT
            out = []
            for t in range(2):
                out.append(f"ds_read_b128 v[{ft+4*t}:{ft+4*t+3}], v{ta + h} offset:{so + t * 2048}")
            for b in range(6):
                for h2 in range(2):
                    out.append(f"ds_read_b64_tr_b16 v[{fw+4*b+2*h2}:{fw+4*b+2*h2+1}], v{wa+b} offset:{so + h * 6144 + h2 * 768}")
            out.append(f"ds_read_b128 v[{ft+8}:{ft+11}], v{HA + 2*(c % 2) + h} offset:{(c // 2) * 256}")
            return out

        def wait_landed(c, first):
            L = f"L_{label}_cl{w}_{c}"
            if not first:
                a("v_readfirstlane_b32 s40, v17")
                a("s_cmp_ge_u32 s40, 4")
                a.raw(f"    s_cbranch_scc1 {L}x")
            a.raw(f"{L}:")
            a(f"ds_read_b32 v17, v18 offset:{4*c}")
            a("s_waitcnt lgkmcnt(0)")
            a("v_readfirstlane_b32 s40, v17")
            a("s_cmp_lt_u32 s40, 4")
            a.raw(f"    s_cbranch_scc1 {L}")
            a.raw(f"{L}x:")

        wait_landed(0, True)
        if w == 0:
            stamp(a, "p1 first data")
        for x in reads(0):
            a(x)
        for s in range(16):
            c, h = s // 2, s % 2
            fw = FW + 24 * (s % 2); ft = FT + 12 * (s % 2)
            a("s_waitcnt lgkmcnt(0)")
            W = lambda b: f"v[{fw+4*b}:{fw+4*b+3}]"
            T = lambda t: f"v[{ft+4*t}:{ft+4*t+3}]"
            mf = lambda acc, A, B: f"v_mfma_f32_16x16x32_bf16 v[{acc}:{acc+3}], {A}, {B}, v[{acc}:{acc+3}]"
            M = []
            for t in range(2):
                for b in range(4):
                    M.append(mf(ACC + (b * 2 + t) * 4, W(b), T(t)))
                for b in range(4, 6):
                    M.append(mf(ACC + (b * 2 + t) * 4, T(t), W(b)))
                M.append(mf(RS + 4 * t, f"v[{ONES}:{ONES+3}]", T(t)))
                M.append(mf(SQ + 4 * t, T(t), T(t)))
            if w < 2:
                M += [mf(HX, W(2 + w), T(2)), mf(HX + 4, W(w), T(2))]
            elif w == 2:
                M += [mf(HX, T(2), W(4)), mf(HX + 4, T(2), W(5))]
            else:
                M += [mf(HX, f"v[{ONES}:{ONES+3}]", T(2)), mf(HX + 4, T(2), T(2))]
            a(M[0]); a(M[1])
            if s + 1 < 16:
                if h == 1:
                    if c < 3 or c == 4:
                        a("s_mov_b64 exec, 1")
                        a(f"ds_add_u32 v18, v19 offset:{32 + 4*c}")
                        a("s_mov_b64 exec, -1")
                    wait_landed(c + 1, False)
                    if w == 0 and "chunkts" in EXP: stamp(a, f"c{c+1}")
            R = reads(s + 1) if s + 1 < 16 else []
            if h == 0 and c + 1 < 8:
                R = R + [f"ds_read_b32 v17, v18 offset:{4*(c+1)}"]
            side = [(i * 2 // 3, x) for i, x in enumerate(R)]
            side += [(10 + i, f"v_cndmask_b32 v{ft+8+i}, v{ft+8+i}, v{ONES}, s[56:57]") for i in range(4)]
            interleave(a, M[2:], side)
        if w == 0:
            stamp(a, "p1 loop done")
        PV = lambda ww: P1_EX + ww * 3072
        a.label(f"L_{label}_cx{w}")
        a(f"ds_read_b32 v17, v18 offset:{32 + 16}")
        a("s_waitcnt lgkmcnt(0)")
        a("v_readfirstlane_b32 s40, v17")
        a("s_cmp_lt_u32 s40, 4")
        a(f"s_cbranch_scc1 L_{label}_cx{w}")
        a("v_lshlrev_b32 v9, 3, v6")
        a(f"v_add_u32 v9, {PV(w)}, v9")

        def stats(rs, sq, off):
            a(f"v_cndmask_b32 v10, v{sq}, v{sq+1}, s[58:59]")
            a(f"v_cndmask_b32 v10, v10, v{sq+2}, s[60:61]")
            a(f"v_cndmask_b32 v10, v10, v{sq+3}, s[62:63]")
            a(f"v_mul_f32 v11, {1.0/512!r}, v{rs}")
            a(f"v_mul_f32 v10, {1.0/512!r}, v10")
            a("v_fma_f32 v10, -v11, v11, v10")
            a("v_max_f32 v10, 0, v10")
            a("v_add_f32 v10, 0x3727c5ac, v10")
            a("v_rsq_f32 v12, v10")
            a("v_mul_f32 v13, v11, v12")
            a("v_sub_f32 v13, 0, v13")
            a("s_mov_b64 exec, s[84:85]")
            a(f"ds_write_b64 v9, v[12:13] offset:{off}")
            a("s_mov_b64 exec, -1")
        a(f"v_add_u32 v14, {P1_EX}, v1")
        stats(RS, SQ, 0)
        for i, b in enumerate((2, 3, 4, 5)):
            acc = ACC + (b * 2 + 1) * 4
            a(f"ds_write_b128 v14, v[{acc}:{acc+3}] offset:{12288 + w*4096 + i*1024}")
        stats(RS + 4, SQ + 4, 128)
        if w == 3:
            stats(HX, HX + 4, 256)
        if w < 3:
            a(f"ds_write_b128 v14, v[{HX}:{HX+3}] offset:{w*3072 + 1024}")
            if w == 2:
                a(f"ds_write_b128 v14, v[{HX+4}:{HX+7}] offset:{w*3072 + 2048}")
        if w < 2:
            a("v_lshlrev_b32 v11, 4, v5")
            a(f"v_add_u32 v11, {PV(w)}, v11")
            a("s_mov_b64 exec, s[56:57]")
            a(f"ds_write_b128 v11, v[{HX}:{HX+3}] offset:512")
            a(f"ds_write_b128 v11, v[{HX+4}:{HX+7}] offset:576")
            a("s_mov_b64 exec, -1")
        elif w == 2:
            a("v_lshlrev_b32 v11, 2, v6")
            a(f"v_add_u32 v11, {PV(w)}, v11")
            a("s_mov_b64 exec, 0xffff")
            a(f"ds_write_b32 v11, v{HX} offset:512")
            a(f"ds_write_b32 v11, v{HX+4} offset:576")
            a("s_mov_b64 exec, -1")
        SA, SV, CQ, CV, PR = 108, 116, 140, 156, 160
        a("v_lshlrev_b32 v9, 3, v6")
        a("v_lshlrev_b32 v10, 5, v5")
        a("v_lshlrev_b32 v11, 4, v5")
        a("v_lshlrev_b32 v12, 2, v6")
        for r in (9, 10, 11, 12):
            a(f"v_add_u32 v{r}, {P1_EX}, v{r}")
        a("s_waitcnt lgkmcnt(0)")
        bar(a, "A1")
        rel = lambda ww: ww * 3072
        prev_st = rel(3) + 256 if w == 0 else rel(w - 1) + 128
        for i, off in ((1, rel(w)), (0, prev_st), (2, rel(w) + 128)):
            a(f"ds_read_b64 v[{SA+2*i}:{SA+2*i+1}], v9 offset:{off}")
            if i == 1:
                for hd in range(2):
                    a(f"ds_read_b128 v[{CQ+4*hd}:{CQ+4*hd+3}], v11 offset:{rel(hd) + 576}")
                    a(f"ds_read_b128 v[{CQ+8+4*hd}:{CQ+8+4*hd+3}], v11 offset:{rel(hd) + 512}")
                    a(f"ds_read_b32 v{CV+hd}, v12 offset:{rel(2) + 512 + 64*hd}")
            a(f"ds_read_b128 v[{SV+8*i}:{SV+8*i+3}], v10 offset:{off}")
            a(f"ds_read_b128 v[{SV+8*i+4}:{SV+8*i+7}], v10 offset:{off+16}")
        if w == 0:
            srcs = (rel(0) + 1024, rel(1) + 1024, rel(2) + 1024, rel(2) + 2048)
        else:
            srcs = tuple(12288 + (w - 1) * 4096 + i * 1024 for i in range(4))
        for i, off in enumerate(srcs):
            a(f"ds_read_b128 v[{PR+4*i}:{PR+4*i+3}], v14 offset:{off}")
        e = a
        PKB = 188
        pk = lambda b, tb: PKB + (b * 3 + tb) * 2
        src = lambda b, tb: PR + 4 * (b - 2) if tb == 0 else ACC + (b * 2 + tb - 1) * 4
        n = 0
        a("s_waitcnt lgkmcnt(10)")
        for tb in (1, 2, 0):
            if tb == 2:
                a("s_waitcnt lgkmcnt(0)")
            for b in range(6):
                if tb == 0 and b < 2:
                    continue
                r0 = src(b, tb)
                for r in range(4):
                    tmp = 16 + (n % 4); n += 1
                    if b < 4:
                        e(f"v_mul_f32 v{tmp}, v{CQ+4*b+r}, v{SA+2*tb+1}")
                        e(f"v_fmac_f32 v{tmp}, v{r0+r}, v{SA+2*tb}")
                    else:
                        e(f"v_mul_f32 v{tmp}, v{CV+b-4}, v{SV+8*tb+2*r+1}")
                        e(f"v_fmac_f32 v{tmp}, v{r0+r}, v{SV+8*tb+2*r}")
                e(f"v_cvt_pk_bf16_f32 v{pk(b,tb)}, v16, v17")
                e(f"v_cvt_pk_bf16_f32 v{pk(b,tb)+1}, v18, v19")
        SB_, OB_, PB_, OUT = 32, 64, 80, 96
        units = [(t, hd) for t in range(2) for hd in range(2)]
        P2 = lambda r: f"v[{r}:{r+1}]"
        for u, (t, hd) in enumerate(units):
            e(f"v_mfma_f32_16x16x16_bf16 v[{SB_+8*u}:{SB_+8*u+3}], {P2(pk(2+hd, t))}, {P2(pk(hd, t+1))}, 0")
            e(f"v_mfma_f32_16x16x16_bf16 v[{SB_+8*u+4}:{SB_+8*u+7}], {P2(pk(2+hd, t+1))}, {P2(pk(hd, t+1))}, 0")
        MX, SM, TC = 108, 112, 116
        for u, (t, hd) in enumerate(units):
            mp = MP0 if (w == 0 and t == 0) else MP
            for r in range(4):
                e(f"v_fma_f32 v{SB_+8*u+r}, v{SB_+8*u+r}, s87, v{mp+r}")
                e(f"v_fma_f32 v{SB_+8*u+4+r}, v{SB_+8*u+4+r}, s87, v{MC+r}")
            S = lambda i: f"v{SB_+8*u+i}"
            e(f"v_max3_f32 v{MX+u}, {S(0)}, {S(1)}, {S(2)}")
            e(f"v_max3_f32 v{MX+u}, v{MX+u}, {S(3)}, {S(4)}")
            e(f"v_max3_f32 v{MX+u}, v{MX+u}, {S(5)}, {S(6)}")
            e(f"v_max_f32 v{MX+u}, v{MX+u}, {S(7)}")
        for sw in ("v_permlane32_swap_b32", "v_permlane16_swap_b32"):
            for u in range(4):
                e(f"v_mov_b32 v{TC+u}, v{MX+u}")
            for u in range(4):
                e(f"{sw} v{MX+u}, v{TC+u}")
            for u in range(4):
                e(f"v_max_f32 v{MX+u}, v{MX+u}, v{TC+u}")
        for u in range(4):
            for i in range(8):
                e(f"v_sub_f32 v{SB_+8*u+i}, v{SB_+8*u+i}, v{MX+u}")
            for i in range(8):
                e(f"v_exp_f32 v{SB_+8*u+i}, v{SB_+8*u+i}")
        for u in range(4):
            e(f"v_add_f32 v{SM+u}, v{SB_+8*u}, v{SB_+8*u+1}")
            for i in range(2, 8):
                e(f"v_add_f32 v{SM+u}, v{SM+u}, v{SB_+8*u+i}")
        for sw in ("v_permlane32_swap_b32", "v_permlane16_swap_b32"):
            for u in range(4):
                e(f"v_mov_b32 v{TC+u}, v{SM+u}")
            for u in range(4):
                e(f"{sw} v{SM+u}, v{TC+u}")
            for u in range(4):
                e(f"v_add_f32 v{SM+u}, v{SM+u}, v{TC+u}")
        for u in range(4):
            e(f"v_rcp_f32 v{SM+u}, v{SM+u}")
        for u in range(4):
            for i in range(8):
                e(f"v_mul_f32 v{SB_+8*u+i}, v{SB_+8*u+i}, v{SM+u}")
            for i in range(4):
                e(f"v_cvt_pk_bf16_f32 v{PB_+4*u+i}, v{SB_+8*u+2*i}, v{SB_+8*u+2*i+1}")
        for u, (t, hd) in enumerate(units):
            e(f"v_mfma_f32_16x16x16_bf16 v[{OB_+4*u}:{OB_+4*u+3}], {P2(pk(4+hd, t))}, {P2(PB_+4*u)}, 0")
        for u, (t, hd) in enumerate(units):
            e(f"v_mfma_f32_16x16x16_bf16 v[{OB_+4*u}:{OB_+4*u+3}], {P2(pk(4+hd, t+1))}, {P2(PB_+4*u+2)}, v[{OB_+4*u}:{OB_+4*u+3}]")
        a("s_lshl_b32 s38, s29, 17")
        a("s_lshl_b32 s39, s43, 10")
        a("s_add_u32 s38, s38, s39")
        a(f"s_add_u32 s38, s38, {WS_O + 2 * w * 16384}")
        a("s_add_u32 s39, s38, 16384")
        for u, (t, hd) in enumerate(units):
            a(f"v_cvt_pk_bf16_f32 v{OUT+4*t+2*hd}, v{OB_+4*u}, v{OB_+4*u+1}")
            a(f"v_cvt_pk_bf16_f32 v{OUT+4*t+2*hd+1}, v{OB_+4*u+2}, v{OB_+4*u+3}")
        for t in range(2):
            a(f"buffer_store_dwordx4 v[{OUT+4*t}:{OUT+4*t+3}], v1, s[4:7], s{38+t} offen{SC1}")
        if w < 3:
            a(f"s_branch L_{label}_p1join")
    a.label(f"L_{label}_p1join")
    stamp(a, "p1 stored")


def gemm22_setup(a):
    a("s_and_b32 s30, s26, 1")
    a("s_lshr_b32 s31, s26, 1")
    a("s_lshl_b32 s29, s92, 2")
    a("s_lshl_b32 s32, s30, 1")
    a("s_add_u32 s29, s29, s32")
    a("s_add_u32 s33, s29, s31")
    a("s_xor_b32 s32, s31, 1")
    a("s_add_u32 s34, s29, s32")
    a("s_mov_b32 s29, s33")


def gemm22_reduce(a, bar, name, ACC, red_base):
    a("s_xor_b32 s36, s26, 2")
    a("s_lshl_b32 s36, s36, 12")
    a(f"s_add_u32 s36, s36, {red_base}")
    a("v_add_u32 v14, s36, v1")
    a("s_lshl_b32 s36, s26, 12")
    a(f"s_add_u32 s36, s36, {red_base}")
    a("v_add_u32 v15, s36, v1")
    for b in range(4):
        a(f"ds_write_b128 v14, v[{ACC+16+4*b}:{ACC+16+4*b+3}] offset:{b*1024}")
    a("s_waitcnt lgkmcnt(0)")
    bar(a, name)
    for b in range(4):
        a(f"ds_read_b128 v[{ACC+16+4*b}:{ACC+16+4*b+3}], v15 offset:{b*1024}")


P3_AD_ = 7


def c_phase2(a, label, bar):
    FR, TK, ACC, RB = 112, 48, 16, 240
    a(f"v_mov_b32 v14, {LFLAG}")
    wait_lds(a, f"L_{label}_cpl", 14, 15, 128)
    place_from(a, 40)
    gemm22_setup(a)
    tr_addr_perm(a)
    a("s_lshl_b32 s36, s31, 12")
    a("v_add_u32 v12, s36, v12")
    for b in range(4):
        a(f"v_xor_b32 v11, {b}, v8")
        a(f"v_lshl_add_u32 v{248+b}, v11, 5, v12")
    bar(a, "L1")
    for i in range(8):
        for b in range(4):
            for h in range(2):
                r = FR + i * 16 + b * 4 + 2 * h
                a(f"ds_read_b64_tr_b16 v[{r}:{r+1}], v{248+b} offset:{P2_W + i*8192 + h*2048}")
    for i in range(32):
        a(f"v_mov_b32 v{ACC+i}, 0")
    a("v_lshlrev_b32 v7, 10, v6")
    a("v_lshl_add_u32 v7, v5, 3, v7")
    a("s_lshl_b32 s32, s29, 14")
    a("s_lshl_b32 s35, s93, 7")
    a("s_add_u32 s32, s32, s35")
    a("s_lshl_b32 s37, s31, 10")
    a("s_lshl_b32 s33, s33, 14")
    a("s_lshl_b32 s34, s34, 14")
    a(f"s_add_u32 s35, s33, {WS_H}")
    a("s_lshl_b32 s36, s93, 11")
    a("s_add_u32 s35, s35, s36")
    a("s_add_u32 s33, s33, s37")
    a("s_add_u32 s34, s34, s37")
    a("s_waitcnt vmcnt(0) lgkmcnt(0)")
    stamp(a, "p1 drained")
    bar(a, "S1")
    for b in range(4):
        a(f"buffer_load_dwordx2 v[{RB+2*b}:{RB+2*b+1}], v7, s[8:11], s32 offen offset:{b*32}")
    a(f"v_mov_b32 v14, {LFLAG}")
    wait_lds(a, f"L_{label}_cf1", 14, 15, 64 + 4)
    stamp(a, "p2 flags ok")
    for i in range(8):
        for t in range(2):
            if i % 2 == 0 and i:
                a(f"s_add_u32 s{33+t}, s{33+t}, 4096")
            a(f"buffer_load_dwordx4 v[{TK+8*i+4*t}:{TK+8*i+4*t+3}], v1, s[4:7], s{33+t} offen offset:{(i % 2) * 2048}{SC1}")
    for i in range(8):
        a(f"s_waitcnt vmcnt({2 * (7 - i)})")
        if i == 0:
            stamp(a, "p2 first data")
        for t in (1, 0):
            for b in range(4):
                acc = ACC + 16 * t + 4 * b
                a(f"v_mfma_f32_16x16x32_bf16 v[{acc}:{acc+3}], v[{FR+i*16+4*b}:{FR+i*16+4*b+3}], v[{TK+8*i+4*t}:{TK+8*i+4*t+3}], v[{acc}:{acc+3}]")
    gemm22_reduce(a, bar, "R2", ACC, P2_RED)
    TMP = 48
    for b in range(4):
        for r in range(4):
            d = RB + 2 * b + r // 2
            if r % 2 == 0:
                a(f"v_lshlrev_b32 v{TMP+(b*4+r)}, 16, v{d}")
            else:
                a(f"v_and_b32 v{TMP+(b*4+r)}, 0xffff0000, v{d}")
    for i in range(8):
        a(f"v_pk_add_f32 v[{ACC+2*i}:{ACC+2*i+1}], v[{ACC+2*i}:{ACC+2*i+1}], v[{TMP+2*i}:{TMP+2*i+1}]")
    a("s_waitcnt lgkmcnt(0)")
    for i in range(8):
        a(f"v_pk_add_f32 v[{ACC+2*i}:{ACC+2*i+1}], v[{ACC+2*i}:{ACC+2*i+1}], v[{ACC+16+2*i}:{ACC+16+2*i+1}]")
    OB = 64
    for i in range(8):
        a(f"v_cvt_pk_bf16_f32 v{OB+i}, v{ACC+2*i}, v{ACC+2*i+1}")
    for hh in range(2):
        a(f"buffer_store_dwordx4 v[{OB+4*hh}:{OB+4*hh+3}], v1, s[4:7], s35 offen offset:{hh*1024}{SC1}")
    for d in range(8):
        a(f"v_lshlrev_b32 v{TMP+2*d}, 16, v{OB+d}")
        a(f"v_and_b32 v{TMP+2*d+1}, 0xffff0000, v{OB+d}")
    S0 = OB + 8; S1 = S0 + 1
    a(f"v_add_f32 v{S0}, v{TMP}, v{TMP+1}")
    a(f"v_mul_f32 v{S1}, v{TMP}, v{TMP}")
    a(f"v_fmac_f32 v{S1}, v{TMP+1}, v{TMP+1}")
    for i in range(2, 16):
        a(f"v_add_f32 v{S0}, v{S0}, v{TMP+i}")
        a(f"v_fmac_f32 v{S1}, v{TMP+i}, v{TMP+i}")
    C0, C1 = S0 + 2, S0 + 3
    for sw in ("v_permlane32_swap_b32", "v_permlane16_swap_b32"):
        a(f"v_mov_b32 v{C0}, v{S0}")
        a(f"v_mov_b32 v{C1}, v{S1}")
        a(f"{sw} v{S0}, v{C0}")
        a(f"{sw} v{S1}, v{C1}")
        a(f"v_add_f32 v{S0}, v{S0}, v{C0}")
        a(f"v_add_f32 v{S1}, v{S1}, v{C1}")
    a("v_lshlrev_b32 v14, 3, v6")
    a("s_lshl_b32 s39, s29, 10")
    a("s_lshl_b32 s40, s93, 7")
    a("s_add_u32 s39, s39, s40")
    a(f"s_add_u32 s39, s39, {WS_STATS}")
    a("s_mov_b64 exec, 0xffff")
    a(f"buffer_store_dwordx2 v[{S0}:{S1}], v14, s[4:7], s39 offen{SC1}")
    a("s_mov_b64 exec, -1")
    stamp(a, "p2 stored")
    a("s_waitcnt vmcnt(0)")
    stamp(a, "p2 drained")
    bar(a, "S2")


def c_phase3(a, label, bar):
    NS, D = 16, 4
    AD = P3_AD_
    ACC, FB, TK, AB = 16, 128, 184, 248
    tr_addr_perm(a)
    for b in range(3):
        a(f"v_xor_b32 v11, {b}, v8")
        a(f"v_lshl_add_u32 v{243+b}, v11, 5, v12")
        a(f"v_add_u32 v{240+b}, {P3_G}, v{243+b}")
    a("v_xor_b32 v11, 3, v8")
    a("v_lshl_add_u32 v12, v11, 5, v9")
    a("v_and_b32 v11, 1, v10")
    a("v_lshl_add_u32 v12, v11, 3, v12")
    a("v_lshrrev_b32 v11, 1, v10")
    a("v_xor_b32 v11, 1, v11")
    a(f"v_mul_u32_u24 v11, {P3_G}, v11")
    a("v_add_u32 v246, v11, v12")
    for b in range(7):
        a(f"v_mov_b32 v{AD+b}, v{240+b}")
    a(f"v_mov_b32 v14, v{AD}")
    a(f"v_mov_b32 v15, v{AD+4}")
    for w in range(1, 4):
        a(f"s_cmp_eq_u32 s26, {w}")
        a("s_cselect_b64 vcc, -1, 0")
        a(f"v_cndmask_b32 v14, v14, v{AD+w}, vcc")
        a(f"v_cndmask_b32 v15, v15, v{AD+min(w+4,6)}, vcc")
    CF, CA, ONES = 112, 16, 24
    for s in range(16):
        for q in range(2):
            for h in range(2):
                r = CF + s * 8 + q * 4 + 2 * h
                a(f"ds_read_b64_tr_b16 v[{r}:{r+1}], v{14+q} offset:{s*4096 + h*2048}")
    for i in range(8):
        a(f"v_mov_b32 v{CA+i}, 0")
    for i in range(4):
        a(f"v_mov_b32 v{ONES+i}, 0x3f803f80")
    a("s_waitcnt lgkmcnt(0)")
    for s in range(16):
        for q in range(2):
            a(f"v_mfma_f32_16x16x32_bf16 v[{CA+4*q}:{CA+4*q+3}], v[{CF+s*8+4*q}:{CF+s*8+4*q+3}], v[{ONES}:{ONES+3}], v[{CA+4*q}:{CA+4*q+3}]")
    a("s_lshl_b32 s35, s26, 6")
    a(f"s_add_u32 s35, s35, {P3_CS}")
    a("v_lshlrev_b32 v14, 4, v5")
    a("v_add_u32 v15, s35, v14")
    a(f"v_add_u32 v14, {P3_CS}, v14")
    a("s_mov_b32 exec_lo, 0x00010001")
    a("s_mov_b32 exec_hi, 0x00010001")
    a(f"ds_write_b128 v15, v[{CA}:{CA+3}]")
    a(f"ds_write_b128 v15, v[{CA+4}:{CA+7}] offset:256")
    a("s_mov_b64 exec, -1")

    def reads(s):
        fb = FB + 28 * (s % 2)
        return [f"ds_read_b64_tr_b16 v[{fb+4*b+2*h}:{fb+4*b+2*h+1}], v{AD+b} offset:{s*4096 + h*2048}"
                for b in range(7) for h in range(2)]
    for x in reads(0):
        a(x)
    a("s_lshl_b32 s29, s94, 18")
    a("s_lshl_b32 s30, s26, 16")
    a("s_add_u32 s29, s29, s30")
    a(f"s_add_u32 s30, s29, {WS_H}")
    a("v_lshlrev_b32 v15, 3, v6")
    a("v_lshl_add_u32 v15, v5, 7, v15")
    a("s_lshl_b32 s33, s94, 14")
    a("s_lshl_b32 s34, s26, 12")
    a("s_add_u32 s33, s33, s34")
    a(f"s_add_u32 s33, s33, {WS_STATS}")
    a("s_waitcnt lgkmcnt(0)")
    stamp(a, "p3 colsum")
    a(f"v_mov_b32 v248, {LFLAG}")
    a("v_mov_b32 v249, 1")
    a("s_mov_b64 exec, 1")
    a("ds_add_u32 v248, v249 offset:96")
    a("s_mov_b64 exec, -1")
    wait_lds(a, f"L_{label}_cf2", 248, 249, 64 + 8)
    stamp(a, "p3 flags ok")
    vm = VM()

    def tok(s):
        slot = s % D
        return [f"s_add_u32 s32, s30, {t * 16384 + (s // 4) * 4096}\n"
                f"buffer_load_dwordx4 v[{TK+slot*16+4*t}:{TK+slot*16+4*t+3}], v1, s[4:7], s32 offen offset:{(s % 4) * 1024}{SC1}"
                for t in range(4)]
    for s in range(D):
        for x in tok(s):
            a(x); vm.add(("t", s))
    STR = TK
    for s in range(NS):
        slot = s % D
        fb = FB + 28 * (s % 2)
        a("s_waitcnt lgkmcnt(0)")
        vm.wait_for(a, lambda t: t[0] == "t" and t[1] <= s)
        if s == 0:
            stamp(a, "p3 first data")
        if s == 15:
            wait_lds(a, f"L_{label}_ccs", 248, 249, 96, 4)
        M = []
        for t in range(4):
            for b in range(7):
                acc = ACC + (b * 4 + t) * 4
                csrc = "0" if s == 0 else f"v[{acc}:{acc+3}]"
                M.append(f"v_mfma_f32_16x16x32_bf16 v[{acc}:{acc+3}], v[{fb+4*b}:{fb+4*b+3}], v[{TK+slot*16+4*t}:{TK+slot*16+4*t+3}], {csrc}")
        R = reads(s + 1) if s + 1 < NS else []
        side = [(i, x) for i, x in enumerate(R)]
        if s + D < NS:
            side += [(7 * t + 6, x) for t, x in enumerate(tok(s + D))]
            for _ in range(4):
                vm.add(("t", s + D))
        if s == 12:
            for t in range(4):
                for q in range(2):
                    side.append((7 * t + 6, f"buffer_load_dwordx2 v[{STR+4*t+2*q}:{STR+4*t+2*q+1}], v15, s[4:7], s33 offen offset:{t*1024 + q*512}{SC1}"))
                    vm.add(("st", 0))
        if s == 15:
            side += [(b, f"ds_read_b128 v[{FB+4*b}:{FB+4*b+3}], v14 offset:{b*64}") for b in range(7)]
            sv = ["s_waitcnt vmcnt(0)"]
            for t in range(4):
                r = STR + 4 * t
                sv += [f"v_add_f32 v{r}, v{r}, v{r+2}", f"v_add_f32 v{r+1}, v{r+1}, v{r+3}"]
            for sw in ("v_permlane32_swap_b32", "v_permlane16_swap_b32"):
                for t in range(4):
                    r = STR + 4 * t
                    sv += [f"v_mov_b32 v{r+2}, v{r}", f"v_mov_b32 v{r+3}, v{r+1}"]
                for t in range(4):
                    r = STR + 4 * t
                    sv += [f"{sw} v{r}, v{r+2}", f"{sw} v{r+1}, v{r+3}"]
                for t in range(4):
                    r = STR + 4 * t
                    sv += [f"v_add_f32 v{r}, v{r}, v{r+2}", f"v_add_f32 v{r+1}, v{r+1}, v{r+3}"]
            for t in range(4):
                r = STR + 4 * t
                sv += [f"v_mul_f32 v{r}, {-1.0/512!r}, v{r}", f"v_mul_f32 v{r+1}, {1.0/512!r}, v{r+1}",
                       f"v_fma_f32 v{r+1}, -v{r}, v{r}, v{r+1}", f"v_max_f32 v{r+1}, 0, v{r+1}",
                       f"v_add_f32 v{r+1}, 0x3727c5ac, v{r+1}", f"v_rsq_f32 v{AB+2*t}, v{r+1}",
                       f"v_mov_b32 v{r+1}, v{r}", f"v_mov_b32 v{AB+2*t+1}, v{AB+2*t}"]
            side += spread(sv, 0, 28)
        interleave(a, M, side)
    stamp(a, "p3 loop done")
    a("s_waitcnt lgkmcnt(0)")
    bar(a, "A3")
    CSR = FB
    T = 156
    KA_, KB_ = 204, 206
    cA = -2.0 * 0.7978845608028654 * 1.4426950408889634
    cB = cA * 0.044715
    e = a
    e(f"v_mov_b32 v{KA_}, {f2h(cA)}"); e(f"v_mov_b32 v{KA_+1}, {f2h(cA)}")
    e(f"v_mov_b32 v{KB_}, {f2h(cB)}"); e(f"v_mov_b32 v{KB_+1}, {f2h(cB)}")
    e("v_and_b32 v8, 1, v5")
    e("v_lshlrev_b32 v8, 8, v8")
    e("v_lshl_add_u32 v8, v6, 4, v8")
    e("v_lshrrev_b32 v9, 1, v5")
    e(f"v_mul_u32_u24 v10, {56*1024}, v9")
    e("v_add_u32 v8, v10, v8")
    e("v_and_b32 v11, 1, v5")
    e("v_lshl_add_u32 v9, v11, 1, v9")
    e(f"v_mul_u32_u24 v9, {56*1024}, v9")
    e("v_lshl_add_u32 v9, v6, 4, v9")
    e(f"s_mul_i32 s36, s94, {16 * 56 * 1024}")
    e(f"s_mul_i32 s37, s26, {4 * 56 * 1024}")
    e("s_add_u32 s36, s36, s37")
    e(f"s_mul_i32 s37, s95, {7 * 256}")
    e("s_add_u32 s36, s36, s37")
    e(f"s_add_u32 s36, s36, {WS_ACT}")

    def scale(r0, t):
        b = (r0 - ACC) // 16
        for h in range(2):
            e(f"v_pk_fma_f32 v[{r0+2*h}:{r0+2*h+1}], v[{CSR+4*b+2*h}:{CSR+4*b+2*h+1}], v[{STR+4*t}:{STR+4*t+1}], v[{r0+2*h}:{r0+2*h+1}]")
            e(f"v_pk_mul_f32 v[{r0+2*h}:{r0+2*h+1}], v[{r0+2*h}:{r0+2*h+1}], v[{AB+2*t}:{AB+2*t+1}]")

    def geglu(gr, ur, outr, tb):
        for h in range(2):
            g = f"v[{gr+2*h}:{gr+2*h+1}]"
            t1 = f"v[{tb+4*h}:{tb+4*h+1}]"
            e(f"v_pk_mul_f32 {t1}, {g}, {g}")
            e(f"v_pk_fma_f32 {t1}, {t1}, v[{KB_}:{KB_+1}], v[{KA_}:{KA_+1}]")
            e(f"v_pk_mul_f32 {t1}, {t1}, {g}")
        for h in range(2):
            for x in range(2):
                e(f"v_exp_f32 v{tb+4*h+x}, v{tb+4*h+x}")
        for h in range(2):
            e(f"v_pk_mul_f32 v[{tb+4*h+2}:{tb+4*h+3}], v[{gr+2*h}:{gr+2*h+1}], v[{ur+2*h}:{ur+2*h+1}]")
            e(f"v_pk_add_f32 v[{tb+4*h}:{tb+4*h+1}], v[{tb+4*h}:{tb+4*h+1}], 1.0 op_sel_hi:[1,0]")
        for h in range(2):
            for x in range(2):
                e(f"v_rcp_f32 v{tb+4*h+x}, v{tb+4*h+x}")
        for h in range(2):
            e(f"v_pk_mul_f32 v[{tb+4*h}:{tb+4*h+1}], v[{tb+4*h}:{tb+4*h+1}], v[{tb+4*h+2}:{tb+4*h+3}]")
        for h in range(2):
            e(f"v_cvt_pk_bf16_f32 v{outr+h}, v{tb+4*h}, v{tb+4*h+1}")

    A_ = lambda b, t: ACC + (b * 4 + t) * 4
    OA, OBB, OC = 208, 224, 232
    n = 0
    for t in range(4):
        for p in range(2):
            scale(A_(p, t), t); scale(A_(3 + p, t), t)
            geglu(A_(p, t), A_(3 + p, t), OA + 4 * t + 2 * p, T + 8 * (n % 3)); n += 1
        e(f"s_add_u32 s37, s36, {t * 56 * 1024}")
        e(f"buffer_store_dwordx4 v[{OA+4*t}:{OA+4*t+3}], v1, s[4:7], s37 offen{SC1}")
    for t in range(4):
        scale(A_(2, t), t); scale(A_(5, t), t)
        geglu(A_(2, t), A_(5, t), OBB + 4 * (t // 2) + 2 * (t % 2), T + 8 * (n % 3)); n += 1
        if t % 2 == 1:
            o = OBB + 4 * (t // 2)
            e(f"v_permlane32_swap_b32 v{o}, v{o+2}")
            e(f"v_permlane32_swap_b32 v{o+1}, v{o+3}")
            e(f"s_add_u32 s37, s36, {(t - 1) * 56 * 1024}")
            e(f"buffer_store_dwordx4 v[{o}:{o+3}], v8, s[4:7], s37 offen offset:1024{SC1}")
    for t in range(4):
        scale(A_(6, t), t)
    for t0 in (0, 2):
        for r in range(4):
            e(f"v_permlane32_swap_b32 v{A_(6, t0)+r}, v{A_(6, t0+1)+r}")
        geglu(A_(6, t0), A_(6, t0 + 1), OC + t0, T + 8 * (n % 3)); n += 1
    e(f"v_permlane16_swap_b32 v{OC}, v{OC+2}")
    e(f"v_permlane16_swap_b32 v{OC+1}, v{OC+3}")
    e(f"buffer_store_dwordx4 v[{OC}:{OC+3}], v9, s[4:7], s36 offen offset:1536{SC1}")
    stamp(a, "p3 stored")


def c_phase4(a, label, bar):
    NI, D = 28, 7
    ACC, FR, TK, AD, RB = 16, 48, 176, 236, 248
    gemm22_setup(a)
    a("v_bfe_u32 v12, v4, 2, 2")
    a("v_lshl_add_u32 v13, v5, 3, v12")
    a("v_lshlrev_b32 v13, 7, v13")
    a("v_and_b32 v14, 3, v4")
    a("v_lshl_add_u32 v13, v14, 3, v13")
    a("s_lshl_b32 s36, s31, 12")
    a("v_add_u32 v13, s36, v13")
    a("v_lshrrev_b32 v12, 1, v12")
    a("v_and_b32 v14, 1, v5")
    a("v_lshl_add_u32 v12, v14, 1, v12")
    for b in range(4):
        a(f"v_xor_b32 v14, {b}, v12")
        a(f"v_lshl_add_u32 v{AD+b}, v14, 5, v13")
        a(f"v_add_u32 v{AD+4+b}, 65536, v{AD+b}")
        a(f"v_add_u32 v{AD+8+b}, 131072, v{AD+b}")

    def rd(i):
        pos = (i % 20) * 8192
        base = AD + 4 * (pos // 65536)
        off = pos % 65536
        dst = FR + (i % 8) * 16
        return [f"ds_read_b64_tr_b16 v[{dst+4*b+2*h}:{dst+4*b+2*h+1}], v{base+b} offset:{off + h*512}"
                for b in range(4) for h in range(2)]
    bar(a, "L3")
    for i in range(8):
        for x in rd(i):
            a(x)
    a("s_waitcnt vmcnt(0)")
    stamp(a, "p3 drained")
    for i in range(32):
        a(f"v_mov_b32 v{ACC+i}, 0")
    srd(a, 20, 78, 2048 * 1024)
    a("v_lshlrev_b32 v7, 10, v6")
    a("v_lshl_add_u32 v7, v5, 3, v7")
    a("s_lshl_b32 s32, s29, 14")
    a("s_lshl_b32 s35, s93, 7")
    a("s_add_u32 s32, s32, s35")
    a("s_lshl_b32 s35, s29, 14")
    a("s_lshl_b32 s36, s93, 11")
    a("s_add_u32 s35, s35, s36")
    a(f"s_add_u32 s35, s35, {WS_H}")
    a("s_lshl_b32 s37, s31, 10")
    a(f"s_add_u32 s37, s37, {WS_ACT}")
    a(f"s_mul_i32 s33, s33, {56 * 1024}")
    a(f"s_mul_i32 s34, s34, {56 * 1024}")
    a("s_add_u32 s33, s33, s37")
    a("s_add_u32 s34, s34, s37")
    a("s_waitcnt lgkmcnt(0)")
    bar(a, "S3")
    for hh in range(2):
        a(f"buffer_load_dwordx4 v[{RB+4*hh}:{RB+4*hh+3}], v1, s[4:7], s35 offen offset:{hh*1024}{SC1}")
    bar(a, "F3")
    stamp(a, "p4 flags ok")
    vm = VM()

    def tok(i):
        out = []
        for t in range(2):
            r = TK + 8 * (i % D) + 4 * t
            pre = f"s_add_u32 s{33+t}, s{33+t}, 4096\n" if (i % 2 == 0 and i) else ""
            out.append(pre + f"buffer_load_dwordx4 v[{r}:{r+3}], v1, s[4:7], s{33+t} offen offset:{(i % 2) * 2048}{SC1}")
        return out
    for i in range(D):
        for x in tok(i):
            a(x); vm.add(i)
    for i in range(NI):
        if i >= 8:
            a("s_waitcnt lgkmcnt(8)" if i + 8 <= NI else "s_waitcnt lgkmcnt(0)")
        vm.wait_for(a, lambda t: t <= i)
        if i == 0:
            stamp(a, "p4 first data")
        if i == 8:
            bar(a, "M4")
        M = []
        for b in range(4):
            for t in range(2):
                acc = ACC + 16 * t + 4 * b
                fr = FR + (i % 8) * 16 + 4 * b
                r = TK + 8 * (i % D) + 4 * t
                M.append(f"v_mfma_f32_16x16x32_bf16 v[{acc}:{acc+3}], v[{fr}:{fr+3}], v[{r}:{r+3}], v[{acc}:{acc+3}]")
        side = []
        if i + 8 < NI:
            side += [(2 * (k // 2) + 1, x) for k, x in enumerate(rd(i + 8))]
        if i + D < NI:
            side += [(7, x) for x in tok(i + D)]
            vm.add(i + D); vm.add(i + D)
        interleave(a, M, side)
    stamp(a, "p4 loop done")
    bar(a, "Q4")
    gemm22_reduce(a, bar, "R4", ACC, 0)
    TMP = 48
    for b in range(4):
        for r in range(4):
            d = RB + 2 * b + r // 2
            if r % 2 == 0:
                a(f"v_lshlrev_b32 v{TMP+(b*4+r)}, 16, v{d}")
            else:
                a(f"v_and_b32 v{TMP+(b*4+r)}, 0xffff0000, v{d}")
    for i in range(8):
        a(f"v_pk_add_f32 v[{ACC+2*i}:{ACC+2*i+1}], v[{ACC+2*i}:{ACC+2*i+1}], v[{TMP+2*i}:{TMP+2*i+1}]")
    a("s_waitcnt lgkmcnt(0)")
    for i in range(8):
        a(f"v_pk_add_f32 v[{ACC+2*i}:{ACC+2*i+1}], v[{ACC+2*i}:{ACC+2*i+1}], v[{ACC+16+2*i}:{ACC+16+2*i+1}]")
    OB = 64
    for i in range(8):
        a(f"v_cvt_pk_bf16_f32 v{OB+i}, v{ACC+2*i}, v{ACC+2*i+1}")
    for b in range(4):
        a(f"buffer_store_dwordx2 v[{OB+2*b}:{OB+2*b+1}], v7, s[20:23], s32 offen offset:{b*32}")


def mega(label):
    a = Asm()
    common(a, label)
    bc, bh = Bars(), Bars()
    c_phase1(a, label, bc)
    c_phase2(a, label, bc)
    c_phase3(a, label, bc)
    c_phase4(a, label, bc)
    if TIMESTAMPS:
        a("s_waitcnt vmcnt(0)")
        stamp(a, "end")
        a("s_cmp_lg_u32 s26, 0")
        a(f"s_cbranch_scc1 L_end_{label}")
        if "dbgts" in EXP:
            a("s_cmp_lg_u32 s2, 133")
            a(f"s_cbranch_scc1 L_end_{label}")
            a("v_readlane_b32 s92, v2, 0")
            srd(a, 20, 80, 256)
            a("v_subrev_u32 v252, s92, v2")
            a("v_lshlrev_b32 v251, 2, v4")
            a("v_subrev_u32 v251, 12, v251")
            a(f"s_mov_b64 exec, {hex(((1 << 19) - 1) & ~15)}")
            a("buffer_store_dword v252, v251, s[20:23], 0 offen")
            a("s_endpgm")
        a("v_readlane_b32 s92, v2, 0")
        a("v_readlane_b32 s93, v3, 0")
        a("v_mov_b32 v252, s92\nv_mov_b32 v253, s93\nv_mov_b32 v254, v2\nv_mov_b32 v255, v3")
        a("v_lshlrev_b32 v251, 12, v4")
        a("s_lshl_b32 s92, s2, 4")
        a(f"s_add_u32 s92, s92, {WS_TS}")
        a(f"s_mov_b64 exec, {(1 << len(STAMPS)) - 1}")
        a("buffer_store_dwordx4 v[252:255], v251, s[4:7], s92 offen")
        print("stamps:", list(enumerate(STAMPS)))
    a.label(f"L_end_{label}")
    a("s_endpgm")
    helper(a, label, bh)
    assert bc.seq == bh.seq, (bc.seq, bh.seq)
    return a


def build(fn):
    label = f"{NAME}_kernel"
    a = mega(label)
    o = open(f"cdna_kernels/{NAME}.s.ref").read().split("; Override launch")[0].rstrip("\n").split("\n")
    o.append("; @launch grid=(256,1,1) block=(512,1,1) lds=163840")
    o += ['.amdgcn_target "amdgcn-amd-amdhsa--gfx950"', ".text",
          f".globl {label}", ".p2align 8", f".type {label},@function", f"{label}:"]
    o += a.lines
    o += ['.section .rodata,"a"', ".p2align 6", f".amdhsa_kernel {label}",
          "  .amdhsa_next_free_vgpr 256", "  .amdhsa_next_free_sgpr 102", "  .amdhsa_accum_offset 256",
          "  .amdhsa_group_segment_fixed_size 0", "  .amdhsa_kernarg_size 80", "  .amdhsa_user_sgpr_count 2",
          "  .amdhsa_user_sgpr_kernarg_segment_ptr 1", "  .amdhsa_system_sgpr_workgroup_id_x 1",
          ".end_amdhsa_kernel"]
    open(fn, "w").write("\n".join(o) + "\n")


if __name__ == "__main__":
    import argparse
    ap = argparse.ArgumentParser()
    ap.add_argument("--ts", action="store_true")
    ap.add_argument("--exp", default="")
    ap.add_argument("-o", default=f"cdna_kernels/{NAME}.s")
    args = ap.parse_args()
    TIMESTAMPS = args.ts
    EXP = set(args.exp.split(",")) if args.exp else set()
    for e in EXP:
        if e.startswith("warmat"): WARM_AT = int(e[6:])
    build(args.o)
```

```python
import sys, math, struct
sys.path.insert(0, "tools")
from dsl import Asm

NAME = "sequential_preLN__sliding_local_dilated__geglu_ffn__prompt"
WS_O = 0
WS_H = 2 << 20
WS_ACT = 4 << 20
WS_STATS = 12 << 20
WS_FLAG = 13 << 20
WS_TS = 128 << 20
WS_SIZE = 268435456

TIMESTAMPS = False
EXP = set()
STAMPS = []
SC1 = " sc1"

P1_H, P1_RING, P1_SLOT, P1_NSLOT = 0, 16384, 28672, 5
P1_EX = 131328
P2_W = 0
P2_RED = 131328
P3_G, P3_U, P3_CS = 65552, 0, 148480
GATE_EARLY = 16
LFLAG = 163584
WARM_AT = 7


def f2h(x):
    return "0x%08x" % struct.unpack("<I", struct.pack("<f", x))[0]


def srd(a, r, src, size):
    a(f"s_mov_b32 s{r}, s{src}")
    a(f"s_and_b32 s{r+1}, s{src+1}, 0xffff")
    a(f"s_mov_b32 s{r+2}, {size}")
    a(f"s_mov_b32 s{r+3}, 0x00020000")


def stamp(a, name):
    if not TIMESTAMPS:
        return
    if name in STAMPS:
        i = STAMPS.index(name)
    else:
        i = len(STAMPS); STAMPS.append(name)
    a("s_memtime s[96:97]" if "cyc" in EXP else "s_memrealtime s[96:97]")
    a("s_waitcnt lgkmcnt(0)")
    a(f"v_writelane_b32 v2, s96, {i}")
    a(f"v_writelane_b32 v3, s97, {i}")


def interleave(a, main, side):
    ext = {}
    for pos, t in side:
        ext.setdefault(min(pos, len(main) - 1), []).append(t)
    for t in ext.get(-1, []):
        a(t)
    for i, m in enumerate(main):
        a(m)
        for t in ext.get(i, []):
            a(t)


def spread(items, start, end):
    n = len(items)
    return [(start + (i * (end - start)) // max(n, 1), t) for i, t in enumerate(items)]


class VM:
    def __init__(self):
        self.order = []

    def add(self, tag):
        self.order.append(tag)

    def wait_for(self, a, pred):
        idx = [i for i, t in enumerate(self.order) if pred(t)]
        if not idx:
            return
        n = len(self.order) - 1 - max(idx)
        a(f"s_waitcnt vmcnt({min(n, 63)})")


class Bars:
    def __init__(self):
        self.seq = []

    def __call__(self, a, name):
        self.seq.append(name)
        a("s_barrier")


def common(a, label):
    stamp(a, "start")
    a("s_load_dwordx16 s[64:79], s[0:1], 0")
    a("s_load_dwordx4 s[80:83], s[0:1], 64")
    a("s_cmp_ge_u32 s2, 256")
    a(f"s_cbranch_scc1 L_end_{label}")
    a("s_and_b32 s24, s2, 7")
    a("s_lshr_b32 s25, s2, 3")
    a("v_lshrrev_b32 v7, 6, v0")
    a("v_and_b32 v4, 63, v0")
    a("v_readfirstlane_b32 s26, v7")
    a("v_lshlrev_b32 v1, 4, v4")
    a("v_lshrrev_b32 v5, 4, v4")
    a("v_and_b32 v6, 15, v4")
    a("s_memrealtime s[90:91]")
    a("s_and_b32 s27, s26, 3")
    a("s_lshr_b32 s28, s25, 3")
    a("s_and_b32 s93, s25, 7")
    a("s_lshr_b32 s29, s24, 1")
    a("s_lshl_b32 s29, s29, 2")
    a("s_add_u32 s29, s29, s28")
    a("s_and_b32 s43, s24, 1")
    a("s_lshl_b32 s43, s43, 3")
    a("s_add_u32 s43, s43, s93")
    a("v_lshlrev_b32 v7, 2, v4")
    a(f"v_add_u32 v7, {LFLAG}, v7")
    a("v_mov_b32 v8, 0")
    a("ds_write_b32 v7, v8")
    a("s_cmp_ge_u32 s26, 4")
    a(f"s_cbranch_scc1 L_{label}_helper")


def place_from(a, sreg):
    a(f"s_and_b32 s24, s{sreg}, 7")
    a(f"s_bfe_u32 s25, s{sreg}, 0x50008")
    a("s_lshr_b32 s28, s25, 3")
    a("s_and_b32 s93, s25, 7")
    a("s_lshl_b32 s92, s24, 2")
    a("s_add_u32 s92, s92, s28")
    a("s_and_b32 s94, s24, 4")
    a("s_add_u32 s94, s94, s28")
    a("s_and_b32 s95, s24, 3")
    a("s_lshl_b32 s95, s95, 3")
    a("s_add_u32 s95, s95, s93")


def FSH():
    return 2 if "dense" in EXP else (4 if "dense16" in EXP else 7)


def flag_store(a, label, phase, tile_sreg):
    a("s_cmp_lg_u32 s26, 4")
    a(f"s_cbranch_scc1 L_{label}_sig{phase}")
    a(f"s_lshl_b32 s40, s{tile_sreg}, {FSH()}")
    a(f"s_add_u32 s40, s40, {WS_FLAG + (phase - 1) * 32768}")
    a("v_mov_b32 v8, s88")
    a("v_mov_b32 v9, 0")
    a("s_mov_b64 exec, 1")
    a("buffer_store_dword v8, v9, s[4:7], s40 offen sc1")
    a("s_mov_b64 exec, -1")
    a.label(f"L_{label}_sig{phase}")


def flag_poll(a, label, phase, first_sreg, n):
    a("s_cmp_lg_u32 s26, 4")
    a(f"s_cbranch_scc1 L_{label}_wt{phase}")
    a("s_mov_b32 s40, 0")
    a(f"v_lshlrev_b32 v8, {FSH()}, v4")
    a(f"s_lshl_b32 s41, s{first_sreg}, {FSH()}")
    a(f"s_add_u32 s41, s41, {WS_FLAG + (phase - 1) * 32768}")
    a(f"s_mov_b64 exec, {hex((1 << n) - 1)}")
    if "pipepoll" in EXP:
        NP = 3
        for k in range(NP - 1):
            a(f"buffer_load_dword v{9+k}, v8, s[4:7], s41 offen sc1")
            a("s_sleep 2")
        a.label(f"L_{label}_pl{phase}")
        for k in range(NP):
            a(f"buffer_load_dword v{9 + (k + NP - 1) % NP}, v8, s[4:7], s41 offen sc1")
            a(f"s_waitcnt vmcnt({NP - 1})")
            a(f"v_cmp_ne_u32 vcc, s88, v{9+k}")
            a(f"s_cbranch_vccz L_{label}_px{phase}")
        a("s_add_u32 s40, s40, 1")
        a("s_cmp_lt_u32 s40, 0x20000")
        a(f"s_cbranch_scc1 L_{label}_pl{phase}")
    else:
        a.label(f"L_{label}_pl{phase}")
        for e_ in EXP:
            if e_.startswith("psleep"): a(f"s_sleep {e_[6:] or 4}")
        a("buffer_load_dword v9, v8, s[4:7], s41 offen sc1")
        a("s_add_u32 s40, s40, 1")
        a("s_waitcnt vmcnt(0)")
        a("v_cmp_ne_u32 vcc, s88, v9")
        if "pmask" in EXP:
            a(f"s_cbranch_vccz L_{label}_px{phase}")
            a("s_mov_b64 exec, vcc")
        a("s_cmp_gt_u32 s40, 0x40000")
        a(f"s_cbranch_scc1 L_{label}_px{phase}")
        a(f"s_cbranch_vccnz L_{label}_pl{phase}")
    a.label(f"L_{label}_px{phase}")
    if phase < 3:
        a("s_mov_b64 exec, 1")
        a(f"ds_write_b32 v31, v19 offset:{64 + 4*phase}")
    a("s_mov_b64 exec, -1")
    a.label(f"L_{label}_wt{phase}")


def wait_lds(a, name, areg, treg, off, val=1):
    a.label(name)
    if "hsleep" in EXP and areg == 31: a("s_sleep 2")
    a(f"ds_read_b32 v{treg}, v{areg} offset:{off}")
    a("s_waitcnt lgkmcnt(0)")
    a(f"v_readfirstlane_b32 s40, v{treg}")
    a(f"s_cmp_lt_u32 s40, {val}")
    a(f"s_cbranch_scc1 {name}")


def helper(a, label, bar):
    a.label(f"L_{label}_helper")
    NSLOT = P1_NSLOT
    a("v_lshrrev_b32 v8, 3, v4")
    a("v_and_b32 v7, 7, v4")
    a("v_xor_b32 v7, v7, v8")
    a("v_lshlrev_b32 v8, 10, v8")
    a("v_lshl_add_u32 v20, v7, 4, v8")
    for j in range(3):
        a(f"v_add_u32 v12, {64*j}, v4")
        a("v_mul_u32_u24 v13, 43691, v12")
        a("v_lshrrev_b32 v13, 19, v13")
        a("v_mul_u32_u24 v14, 12, v13")
        a("v_sub_u32 v14, v12, v14")
        a("v_lshrrev_b32 v15, 1, v14")
        a("v_bfe_u32 v16, v13, 3, 1")
        a("v_sub_u32 v15, v15, v16")
        a("v_add_u32 v16, 6, v15")
        a("v_min_u32 v15, v15, v16")
        a("v_lshrrev_b32 v16, 1, v15")
        a("v_lshlrev_b32 v16, 10, v16")
        a("v_and_b32 v15, 1, v15")
        a("v_lshl_add_u32 v16, v15, 5, v16")
        a("v_and_b32 v14, 1, v14")
        a("v_lshl_add_u32 v16, v14, 4, v16")
        a("v_mul_u32_u24 v13, 3072, v13")
        a(f"v_add_u32 v{21+j}, v13, v16")
    if "rot4" in EXP:
        a("s_and_b32 s42, s25, 3"); a("s_lshl_b32 s42, s42, 1"); a("s_add_u32 s42, s42, s24")
    elif "rot2" in EXP:
        a("s_and_b32 s42, s25, 1"); a("s_lshl_b32 s42, s42, 2"); a("s_add_u32 s42, s42, s24")
    elif "rot8" in EXP:
        a("s_add_u32 s42, s29, s43")
    elif "rotm" in EXP:
        a("s_lshr_b32 s42, s25, 3"); a("s_lshl_b32 s42, s42, 1"); a("s_add_u32 s42, s42, s24")
    elif "rotx" in EXP:
        a("s_mov_b32 s42, s24")
    else:
        a("s_add_u32 s42, s29, s43")
    a("s_and_b32 s42, s42, 7")
    if "stride" in EXP:
        a("s_xor_b32 s41, s29, s43" if "strx" in EXP else "s_mov_b32 s41, s43")
        a("s_and_b32 s41, s41, 3")
        a("s_lshl_b32 s41, s41, 1")
        a("s_add_u32 s41, s41, 1")
    else:
        a("s_mov_b32 s41, 1")
    a("s_lshl_b32 s30, s27, 2")
    for i in range(4):
        a(f"s_add_u32 s32, s30, {i}")
        a("v_xor_b32 v12, s32, v4")
        a("v_lshrrev_b32 v13, 3, v12")
        a("v_mul_u32_u24 v13, s41, v13")
        a("v_add_u32 v13, s42, v13")
        a("v_and_b32 v13, 7, v13")
        a("v_and_b32 v12, 7, v12")
        a("v_lshl_add_u32 v12, v13, 3, v12")
        a(f"v_lshlrev_b32 v{24+i}, 4, v12")
    a("s_lshl_b32 s30, s29, 17")
    a("s_lshl_b32 s31, s27, 15")
    a("s_add_u32 s31, s31, s30")
    a("s_lshl_b32 s32, s27, 12")
    a("s_add_u32 s32, s32, s30")
    a("s_sub_u32 s32, s32, 16384")
    a(f"s_mul_i32 s33, s27, {16 * 3072}")
    a("s_lshl_b32 s34, s43, 6")
    a("s_add_u32 s33, s33, s34")
    a("s_lshl_b32 s35, s27, 12")
    a(f"s_add_u32 s35, s35, {P1_RING}")
    a("s_mul_i32 s36, s27, 3072")
    a(f"s_add_u32 s36, s36, {P1_RING + 16384}")
    a("s_lshl_b32 s37, s27, 12")
    a(f"s_add_u32 s37, s37, {P1_H}")
    for c in range(8):
        a(f"s_mul_i32 s{48+c}, s41, {c}")
        a(f"s_add_u32 s{48+c}, s{48+c}, s42")
        a(f"s_and_b32 s{48+c}, s{48+c}, 7")
    a("s_waitcnt lgkmcnt(0)")
    srd(a, 4, 82, WS_SIZE)
    srd(a, 8, 64, 2048 * 1024)
    srd(a, 16, 66, 512 * 3072)
    vm = VM()

    def issue_w(c):
        a(f"s_mul_i32 s38, s{48+c}, {64 * 3072}")
        a("s_add_u32 s38, s38, s33")
        for j in range(3):
            a(f"s_add_u32 m0, s36, {(c % NSLOT) * P1_SLOT + j * 1024}")
            a(f"buffer_load_dwordx4 v{21+j}, s[16:19], s38 offen lds")
            vm.add(("w", c))

    def issue_t(c):
        a(f"s_lshl_b32 s39, s{48+c}, 7")
        a("s_add_u32 s39, s39, s31")
        a(f"s_add_u32 m0, s35, {(c % NSLOT) * P1_SLOT}")
        for i in range(4):
            if i:
                a(f"s_add_u32 s39, s39, {8192 - 1024}")
            a(f"buffer_load_dwordx4 v20, s[8:11], s39 offen offset:{i*1024} lds")
            vm.add(("t", c))

    issue_w(0); issue_t(0)
    a("s_mov_b32 m0, s37")
    for i in range(4):
        a(f"buffer_load_dwordx4 v{24+i}, s[8:11], s32 offen offset:{i*1024} lds")
        vm.add(("h", 0))
    if "late1" not in EXP:
        issue_w(1); issue_t(1)
    if "tlb" in EXP:
        a("v_lshlrev_b32 v40, 18, v4")
        a("v_lshlrev_b32 v41, 15, v4")
        a("s_cmp_lg_u32 s27, 0")
        a(f"s_cbranch_scc1 L_{label}_tl1")
        a("buffer_load_dword v42, v40, s[4:7], 0 offen sc1")
        srd(a, 56, 78, 2048 * 1024)
        a("buffer_load_dword v43, v41, s[56:59], 0 offen")
        a.label(f"L_{label}_tl1")
        a("s_cmp_lg_u32 s27, 1")
        a(f"s_cbranch_scc1 L_{label}_tl2")
        srd(a, 56, 68, 512 * 1024)
        a("buffer_load_dword v42, v41, s[56:59], 0 offen")
        srd(a, 56, 72, 512 * 3584)
        a("buffer_load_dword v43, v41, s[56:59], 0 offen")
        a.label(f"L_{label}_tl2")
        a("s_cmp_lg_u32 s27, 2")
        a(f"s_cbranch_scc1 L_{label}_tl3")
        srd(a, 56, 74, 512 * 3584)
        a("buffer_load_dword v42, v41, s[56:59], 0 offen")
        srd(a, 56, 76, 1792 * 1024)
        a("buffer_load_dword v43, v41, s[56:59], 0 offen")
        a.label(f"L_{label}_tl3")
        a("s_cmp_lg_u32 s27, 3")
        a(f"s_cbranch_scc1 L_{label}_tl4")
        a("buffer_load_dword v42, v41, s[8:11], 0 offen")
        a("buffer_load_dword v43, v41, s[16:19], 0 offen")
        a.label(f"L_{label}_tl4")
        vm.add(("tl", 0)); vm.add(("tl", 0))
    a("s_lshl_b32 s40, s2, 3")
    a("s_add_u32 s40, s40, s26")
    srd(a, 20, 80, 256)
    a("s_cmp_lg_u32 s40, 7")
    a(f"s_cbranch_scc1 L_{label}_noep")
    a("s_max_u32 s90, s90, 1")
    a("v_mov_b32 v17, s90")
    a("v_mov_b32 v18, 0")
    a("s_mov_b64 exec, 1")
    a("buffer_store_dword v17, v18, s[20:23], 0 offen sc1")
    a("s_mov_b64 exec, -1")
    a("s_waitcnt vmcnt(0)")
    a.label(f"L_{label}_noep")
    a(f"v_mov_b32 v31, {LFLAG}")
    a("v_mov_b32 v19, 1")
    a("s_waitcnt lgkmcnt(0)")
    bar(a, "Z")
    if "noticket" in EXP:
        a("s_lshl_b32 s63, s25, 8")
        a("s_or_b32 s63, s63, s24")
        a("s_or_b32 s63, s63, 0x10000")
        a("v_mov_b32 v17, s63")
        a("ds_write_b32 v31, v17 offset:128")
    a("s_getreg_b32 s62, hwreg(HW_REG_XCC_ID)")
    a("s_and_b32 s62, s62, 7")
    a("v_mov_b32 v18, 0")
    a("v_mov_b32 v38, 1")
    a("s_lshl_b32 s63, s62, 5")
    a("s_cmp_eq_u32 s26, 44" if "noticket" in EXP else "s_cmp_eq_u32 s26, 4")
    a("s_cselect_b32 s63, s63, 0x1000")
    a("s_mov_b64 exec, 1")
    a("buffer_atomic_add v38, v18, s[20:23], s63 offen offset:8 sc0 sc1")
    a("s_mov_b64 exec, -1")
    vm.add(("tk", 0))

    def landed(c):
        vm.wait_for(a, lambda t: (t[0] in ("w", "t") and t[1] <= c) or t[0] == "h")
        a("s_mov_b64 exec, 1")
        a(f"ds_add_u32 v31, v19 offset:{4*c}")
        a("s_mov_b64 exec, -1")

    def wait_consumed(c):
        a.label(f"L_{label}_hc{c}")
        if "hsleep" in EXP: a("s_sleep 2")
        a(f"ds_read_b32 v17, v31 offset:{32 + 4*c}")
        a("s_waitcnt lgkmcnt(0)")
        a("v_readfirstlane_b32 s40, v17")
        a("s_cmp_lt_u32 s40, 4")
        a(f"s_cbranch_scc1 L_{label}_hc{c}")
    seq = "L0 I2 L1 I3 I4 L2 C0 I5 L3 C1 I6 L4 C2 I7 L5 L6 L7"
    if "late1" in EXP:
        seq = "L0 I1 I2 L1 I3 L2 I4 C0 I5 L3 C1 I6 L4 C2 I7 L5 L6 L7"
    for op in seq.split():
        c = int(op[1])
        if op[0] == "L":
            landed(c)
        elif op[0] == "C":
            wait_consumed(c)
        else:
            issue_w(c); issue_t(c)
    a("s_cmp_lg_u32 s26, 44" if "noticket" in EXP else "s_cmp_lg_u32 s26, 4")
    a(f"s_cbranch_scc1 L_{label}_tkw")
    a.label(f"L_{label}_tk")
    a("v_readfirstlane_b32 s63, v38")
    a("s_cmp_lt_u32 s63, 32")
    a(f"s_cbranch_scc1 L_{label}_tkok")
    a("s_add_u32 s62, s62, 1")
    a("s_and_b32 s62, s62, 7")
    a("s_lshl_b32 s63, s62, 5")
    a("v_mov_b32 v38, 1")
    a("s_mov_b64 exec, 1")
    a("buffer_atomic_add v38, v18, s[20:23], s63 offen offset:8 sc0 sc1")
    a("s_mov_b64 exec, -1")
    a("s_waitcnt vmcnt(0)")
    a(f"s_branch L_{label}_tk")
    a.label(f"L_{label}_tkok")
    a("s_lshl_b32 s63, s63, 8")
    a("s_or_b32 s63, s63, s62")
    a("s_or_b32 s63, s63, 0x10000")
    a("v_mov_b32 v17, s63")
    a("s_mov_b64 exec, 1")
    a("ds_write_b32 v31, v17 offset:128")
    a("s_mov_b64 exec, -1")
    a.label(f"L_{label}_tkw")
    wait_lds(a, f"L_{label}_tkp", 31, 17, 128)
    place_from(a, 40)
    a("v_and_b32 v7, 7, v4")
    a("v_lshlrev_b32 v8, 1, v5")
    a("v_xor_b32 v7, v7, v8")
    a("v_lshrrev_b32 v8, 3, v4")
    a("v_lshlrev_b32 v9, 10, v8")
    a("v_lshl_add_u32 v28, v7, 4, v9")
    a("v_mul_u32_u24 v9, 3584, v8")
    a("v_lshl_add_u32 v29, v7, 4, v9")
    a("s_lshl_b32 s44, s27, 13")
    a("s_lshl_b32 s45, s93, 7")
    a("s_add_u32 s44, s44, s45")
    a(f"s_mul_i32 s45, s27, {8 * 3584}")
    a("s_mul_i32 s46, s95, 112")
    a("s_add_u32 s45, s45, s46")
    a("s_lshl_b32 s46, s27, 10")
    srd(a, 12, 68, 512 * 1024)
    a("s_cmp_lt_u32 s27, 2")
    a("s_cselect_b32 s56, s72, s74")
    a("s_cselect_b32 s57, s73, s75")
    a("s_and_b32 s57, s57, 0xffff")
    a(f"s_mov_b32 s58, {512*3584}")
    a("s_mov_b32 s59, 0x00020000")
    a("s_lshl_b32 s60, s25, 4")
    a("s_and_b32 s61, s27, 1")
    a("s_lshl_b32 s61, s61, 3")
    a("s_add_u32 s60, s60, s61")
    a("s_mul_i32 s60, s60, 3584")
    a("s_and_b32 s61, s24, 3")
    a("s_mul_i32 s61, s61, 896")
    a("s_add_u32 s60, s60, s61")
    a("s_lshl_b32 s61, s25, 14")
    a("s_lshl_b32 s47, s27, 12")
    a("s_add_u32 s61, s61, s47")
    warm = [f"buffer_load_dwordx4 v[{64+4*i}:{64+4*i+3}], v1, s[12:15], s61 offen offset:{i * 1024}" for i in range(4)]
    warm += [f"s_add_u32 s47, s60, {i * 3584}\nbuffer_load_dwordx4 v[{80+4*i}:{80+4*i+3}], v1, s[56:59], s47 offen" for i in range(8)]
    if "nopf" in EXP:
        warm = []
    for x in warm:
        a(x); vm.add(("pf", 0))
    a("v_mov_b32 v18, 0")
    a("buffer_load_dword v30, v18, s[20:23], 0 offen sc1")
    vm.add(("ep", 0))
    srd(a, 16, 72, 512 * 3584)

    def p2_w_dma(i):
        a(f"s_add_u32 m0, s46, {P2_W + i * 4096}")
        a(f"s_add_u32 s47, s44, {32 * i * 1024}")
        a("buffer_load_dwordx4 v28, s[12:15], s47 offen lds")
        vm.add(("w2", i))

    def p3_w_dma(img, i, sr):
        a(f"s_add_u32 m0, s46, {img + i * 4096}")
        a(f"s_add_u32 s47, s45, {32 * i * 3584}")
        a(f"buffer_load_dwordx4 v29, s[{sr}:{sr+3}], s47 offen lds")
        vm.add(("w3", i))
    if "a1lds" in EXP:
        wait_lds(a, f"L_{label}_ha1", 31, 17, 100, 4)
    else:
        bar(a, "A1")
    for i in range(16):
        p2_w_dma(i)
    for i in range(GATE_EARLY):
        p3_w_dma(P3_G, i, 16)
        if "pace" in EXP: a("s_sleep 1")
    vm.wait_for(a, lambda t: t[0] == "w2")
    a("v_readfirstlane_b32 s88, v30")
    a("s_cmp_lg_u32 s88, 0")
    a(f"s_cbranch_scc1 L_{label}_epx")
    a("s_mov_b32 s40, 0")
    a.label(f"L_{label}_ep")
    a("buffer_load_dword v30, v18, s[20:23], 0 offen sc1")
    a("s_add_u32 s40, s40, 1")
    a("s_waitcnt vmcnt(0)")
    a("v_readfirstlane_b32 s88, v30")
    a("s_cmp_gt_u32 s40, 0x40000")
    a(f"s_cbranch_scc1 L_{label}_epx")
    a("s_cmp_eq_u32 s88, 0")
    a(f"s_cbranch_scc1 L_{label}_ep")
    a.label(f"L_{label}_epx")
    a("s_lshl_b32 s89, s29, 4")
    a("s_add_u32 s89, s89, s43")
    srd(a, 12, 74, 512 * 3584)
    bar(a, "L1")
    for i in range(GATE_EARLY, 16):
        p3_w_dma(P3_G, i, 16)
    bar(a, "S1")
    flag_store(a, label, 1, 89)
    a("s_cmp_eq_u32 s26, 4")
    a(f"s_cbranch_scc1 L_{label}_noups")
    a(f"s_sub_u32 s37, s45, {8 * 3584}")
    a("s_sub_u32 s38, s46, 1024")
    for i in range(22):
        if i == 21:
            a("s_cmp_lg_u32 s26, 5")
            a(f"s_cbranch_scc1 L_{label}_noups")
        a(f"s_add_u32 m0, s38, {P3_U + i * 3072}")
        a(f"s_add_u32 s47, s37, {24 * i * 3584}")
        a("buffer_load_dwordx4 v29, s[12:15], s47 offen lds")
    a.label(f"L_{label}_noups")
    a("s_lshr_b32 s89, s92, 1")
    a("s_lshl_b32 s89, s89, 4")
    flag_poll(a, label, 1, 89, 16)
    a("s_waitcnt vmcnt(0)")
    bar(a, "R2")
    srd(a, 12, 76, 1792 * 1024)
    a("v_lshrrev_b32 v12, 3, v4")
    a("v_and_b32 v13, 7, v4")
    a("v_and_b32 v14, 1, v5")
    a("v_lshlrev_b32 v14, 1, v14")
    a("s_and_b32 s44, s27, 1")
    a("s_lshl_b32 s44, s44, 2")
    a("v_xor_b32 v13, v13, v14")
    a("v_xor_b32 v13, s44, v13")
    a("v_lshlrev_b32 v13, 4, v13")
    a("v_lshrrev_b32 v14, 2, v12")
    a("v_lshl_add_u32 v36, v12, 10, v13")
    a("v_lshl_add_u32 v34, v14, 12, v36")
    a("v_mul_u32_u24 v14, 12288, v14")
    a("v_add_u32 v32, v14, v36")
    a("v_xor_b32 v33, 64, v32")
    a("v_xor_b32 v35, 64, v34")
    a("v_xor_b32 v37, 64, v36")
    a("s_lshl_b32 s45, s93, 7")
    a(f"s_mul_i32 s46, s27, {56 * 1024}")
    a("s_add_u32 s45, s45, s46")
    a(f"s_mul_i32 s46, s27, {7 * 1024}")
    a("s_lshl_b32 s89, s92, 3")
    a("s_add_u32 s89, s89, s93")
    bar(a, "S2")
    flag_store(a, label, 2, 89)
    a("s_lshl_b32 s89, s94, 5")
    flag_poll(a, label, 2, 89, 32)
    wait_lds(a, f"L_{label}_hf2", 31, 17, 64 + 8)
    if "nohw" not in EXP:
        a("s_lshl_b32 s40, s94, 18")
        a("s_lshl_b32 s41, s27, 16")
        a("s_add_u32 s40, s40, s41")
        a("s_lshl_b32 s41, s93, 11")
        a("s_add_u32 s40, s40, s41")
        a(f"s_add_u32 s40, s40, {WS_H}")
        for t in range(4):
            for q in range(2):
                a(f"s_add_u32 s41, s40, {t * 16384}")
                a(f"buffer_load_dwordx4 v[{128+8*t+4*q}:{128+8*t+4*q+3}], v1, s[4:7], s41 offen offset:{q*1024}{SC1}")
    if "nopf" not in EXP:
        a("s_sleep 32")
        a(f"s_mul_i32 s40, s25, {56 * 1024}")
        a(f"s_mul_i32 s41, s27, {14 * 1024}")
        a("s_add_u32 s40, s40, s41")
        for i in range(14):
            a(f"s_add_u32 s41, s40, {i * 1024}")
            a(f"buffer_load_dwordx4 v[{64+4*i}:{64+4*i+3}], v1, s[12:15], s41 offen")
            a("s_sleep 4")
    a("s_lshl_b32 s89, s94, 5")
    a("s_add_u32 s89, s89, s95")
    bar(a, "A3")

    def p4_w_dma(i):
        m, j = i // 7, i % 7
        rowbase = 4 * j if j < 4 else (32 + 4 * (j - 4) if j < 6 else 48)
        vreg = 32 + (j % 2) if j < 4 else (34 + (j % 2) if j < 6 else 36)
        a(f"s_add_u32 m0, s46, {(28 * m + j) * 1024}")
        a(f"s_add_u32 s47, s45, {(224 * m + rowbase) * 1024}")
        a(f"buffer_load_dwordx4 v{vreg}, s[12:15], s47 offen lds")
    for i in range(35):
        p4_w_dma(i)
        if "pace" in EXP: a("s_sleep 1")
    a("s_waitcnt vmcnt(14)")
    bar(a, "L3")
    a("s_waitcnt vmcnt(0)")
    bar(a, "S3")
    flag_store(a, label, 3, 89)
    a("s_cmp_eq_u32 s26, 4")
    a(f"s_cbranch_scc1 L_{label}_nolate")
    for i in range(28):
        m, j = i // 7, i % 7
        rowbase = 4 * j if j < 4 else (32 + 4 * (j - 4) if j < 6 else 48)
        par = (j + m + 1) % 2
        vreg = (32 if j < 4 else (34 if j < 6 else 36)) + par
        pos = (140 + 21 * m + j - 7) * 1024
        if m == 0:
            a(f"s_add_u32 s48, s46, {pos}\ns_sub_u32 s49, s48, 163840\ns_min_u32 m0, s48, s49")
        else:
            a(f"s_add_u32 m0, s46, {pos - 163840}")
        a(f"s_add_u32 s47, s45, {(56 * (20 + 3 * m - 1) + rowbase) * 1024}")
        a(f"buffer_load_dwordx4 v{vreg}, s[12:15], s47 offen lds")
    a.label(f"L_{label}_nolate")
    a("s_lshr_b32 s89, s92, 2")
    a("s_lshl_b32 s89, s89, 5")
    flag_poll(a, label, 3, 89, 32)
    bar(a, "F3")
    a("s_waitcnt vmcnt(0)")
    bar(a, "M4")
    bar(a, "Q4")
    bar(a, "R4")
    a("s_endpgm")


def tr_addr_perm(a):
    a("v_bfe_u32 v8, v4, 2, 2")
    a("v_lshl_add_u32 v9, v5, 2, v8")
    a("v_lshlrev_b32 v9, 7, v9")
    a("v_and_b32 v10, 3, v4")
    a("v_lshrrev_b32 v8, 1, v8")
    a("v_and_b32 v11, 1, v5")
    a("v_lshl_add_u32 v8, v11, 1, v8")
    a("v_lshl_add_u32 v12, v10, 3, v9")


def c_phase1(a, label, bar):
    NSLOT = P1_NSLOT
    if "prio" in EXP:
        a("s_setprio 2")
    TA0, HA, WA = 20, 22, 26
    WB, WC, TB0, TC0 = 240, 246, 252, 254
    a("s_lshl_b32 s35, s26, 12")
    a(f"s_add_u32 s35, s35, {P1_RING}")
    a("v_and_b32 v7, 7, v6")
    a("v_xor_b32 v7, v7, v5")
    a("v_lshlrev_b32 v8, 7, v6")
    a("v_lshl_add_u32 v8, v7, 4, v8")
    a(f"v_add_u32 v{TA0}, s35, v8")
    a(f"v_xor_b32 v{TA0+1}, 64, v{TA0}")
    for c1 in range(2):
        for h in range(2):
            a(f"v_add_u32 v7, {8*c1 + 4*h}, v5")
            a("v_xor_b32 v7, v7, v6")
            a("v_lshlrev_b32 v8, 10, v6")
            a("v_lshl_add_u32 v8, v7, 4, v8")
            a(f"v_add_u32 v{HA + 2*c1 + h}, {P1_H}, v8")
    a("v_bfe_u32 v7, v4, 2, 2")
    a("v_lshl_add_u32 v7, v5, 3, v7")
    a("v_mul_u32_u24 v7, 192, v7")
    a("v_and_b32 v8, 3, v4")
    a("v_lshl_add_u32 v7, v8, 3, v7")
    a("v_and_b32 v8, 1, v5")
    for b in range(6):
        a(f"v_add_u32 v12, {b}, v8")
        if b == 5:
            a("v_mul_u32_u24 v13, 6, v8")
            a("v_sub_u32 v12, v12, v13")
        a(f"v_lshl_add_u32 v{WA+b}, v12, 5, v7")
        a(f"v_add_u32 v{WA+b}, {P1_RING + 16384}, v{WA+b}")
        a(f"v_add_u32 v{WB+b}, {2 * P1_SLOT}, v{WA+b}")
        a(f"v_add_u32 v{WC+b}, {4 * P1_SLOT}, v{WA+b}")
    for h in range(2):
        a(f"v_add_u32 v{TB0+h}, {2 * P1_SLOT}, v{TA0+h}")
        a(f"v_add_u32 v{TC0+h}, {4 * P1_SLOT}, v{TA0+h}")
    ACC, RS, SQ, HX, ONES, FW, FT = 32, 80, 88, 96, 104, 108, 156
    MC, MP, MP0 = 228, 232, 236
    for i in range(ACC, ONES):
        a(f"v_mov_b32 v{i}, 0")
    for i in range(4):
        a(f"v_mov_b32 v{ONES+i}, 0x3f803f80")
    a("v_cmp_eq_u32 s[56:57], 0, v6")
    a("v_and_b32 v7, 3, v6")
    a("v_cmp_eq_u32 s[58:59], 1, v7")
    a("v_cmp_eq_u32 s[60:61], 2, v7")
    a("v_cmp_eq_u32 s[62:63], 3, v7")
    a("v_lshrrev_b32 v8, 2, v6")
    a("v_cmp_eq_u32 s[84:85], v8, v5")
    a("v_lshlrev_b32 v14, 2, v5")
    a("v_sub_u32 v14, v6, v14")
    a("v_mov_b32 v15, 0xff800000")
    for r in range(4):
        a(f"v_subrev_u32 v16, {r}, v14")
        a("v_and_b32 v17, 0x80000001, v16")
        a("v_cmp_eq_u32 vcc, 0, v17")
        a(f"v_cndmask_b32 v{MC+r}, v15, 0, vcc")
        a("v_add_u32 v16, 1, v16")
        a("v_and_b32 v17, 0x80000001, v16")
        a("v_xor_b32 v17, 0x80000001, v17")
        a("v_cmp_eq_u32 vcc, 0, v17")
        a(f"v_cndmask_b32 v{MP+r}, v15, 0, vcc")
    a("s_cmp_eq_u32 s29, 0")
    a("s_cselect_b32 s86, 0xff800000, 0")
    for r in range(4):
        a(f"v_add_f32 v{MP0+r}, s86, v{MP+r}")
    a(f"s_mov_b32 s87, {f2h(0.25 * 1.4426950408889634)}")
    a(f"v_mov_b32 v18, {LFLAG}")
    a("v_mov_b32 v19, 1")
    a("s_waitcnt lgkmcnt(0)")
    srd(a, 4, 82, WS_SIZE)
    srd(a, 8, 64, 2048 * 1024)
    bar(a, "Z")
    for w in range(1, 4):
        a(f"s_cmp_eq_u32 s26, {w}")
        a(f"s_cbranch_scc1 L_{label}_w{w}")
    seq0 = list(bar.seq)
    for w in range(4):
        if w:
            a.label(f"L_{label}_w{w}")
        bar.seq[:] = seq0

        def reads(s):
            c, h = s // 2, s % 2
            fw = FW + 24 * (s % 2); ft = FT + 12 * (s % 2)
            slot = c % NSLOT
            ta = (TA0, TB0, TC0)[slot // 2]; wa = (WA, WB, WC)[slot // 2]
            so = (slot % 2) * P1_SLOT
            out = []
            for t in range(2):
                out.append(f"ds_read_b128 v[{ft+4*t}:{ft+4*t+3}], v{ta + h} offset:{so + t * 2048}")
            for b in range(6):
                for h2 in range(2):
                    out.append(f"ds_read_b64_tr_b16 v[{fw+4*b+2*h2}:{fw+4*b+2*h2+1}], v{wa+b} offset:{so + h * 6144 + h2 * 768}")
            out.append(f"ds_read_b128 v[{ft+8}:{ft+11}], v{HA + 2*(c % 2) + h} offset:{(c // 2) * 256}")
            return out

        def wait_landed(c, first):
            L = f"L_{label}_cl{w}_{c}"
            if not first:
                a("v_readfirstlane_b32 s40, v17")
                a("s_cmp_ge_u32 s40, 4")
                a.raw(f"    s_cbranch_scc1 {L}x")
            a.raw(f"{L}:")
            a(f"ds_read_b32 v17, v18 offset:{4*c}")
            a("s_waitcnt lgkmcnt(0)")
            a("v_readfirstlane_b32 s40, v17")
            a("s_cmp_lt_u32 s40, 4")
            a.raw(f"    s_cbranch_scc1 {L}")
            a.raw(f"{L}x:")

        wait_landed(0, True)
        if w == 0:
            stamp(a, "p1 first data")
        for x in reads(0):
            a(x)
        for s in range(16):
            c, h = s // 2, s % 2
            fw = FW + 24 * (s % 2); ft = FT + 12 * (s % 2)
            a("s_waitcnt lgkmcnt(0)")
            W = lambda b: f"v[{fw+4*b}:{fw+4*b+3}]"
            T = lambda t: f"v[{ft+4*t}:{ft+4*t+3}]"
            mf = lambda acc, A, B: f"v_mfma_f32_16x16x32_bf16 v[{acc}:{acc+3}], {A}, {B}, v[{acc}:{acc+3}]"
            M = []
            for t in range(2):
                for b in range(4):
                    M.append(mf(ACC + (b * 2 + t) * 4, W(b), T(t)))
                for b in range(4, 6):
                    M.append(mf(ACC + (b * 2 + t) * 4, T(t), W(b)))
                M.append(mf(RS + 4 * t, f"v[{ONES}:{ONES+3}]", T(t)))
                M.append(mf(SQ + 4 * t, T(t), T(t)))
            if w < 2:
                M += [mf(HX, W(2 + w), T(2)), mf(HX + 4, W(w), T(2))]
            elif w == 2:
                M += [mf(HX, T(2), W(4)), mf(HX + 4, T(2), W(5))]
            else:
                M += [mf(HX, f"v[{ONES}:{ONES+3}]", T(2)), mf(HX + 4, T(2), T(2))]
            a(M[0]); a(M[1])
            if s + 1 < 16:
                if h == 1:
                    if c < 3 or c == 4:
                        a("s_mov_b64 exec, 1")
                        a(f"ds_add_u32 v18, v19 offset:{32 + 4*c}")
                        a("s_mov_b64 exec, -1")
                    wait_landed(c + 1, False)
                    if w == 0 and "chunkts" in EXP: stamp(a, f"c{c+1}")
            R = reads(s + 1) if s + 1 < 16 else []
            if h == 0 and c + 1 < 8:
                R = R + [f"ds_read_b32 v17, v18 offset:{4*(c+1)}"]
            side = [(i * 2 // 3, x) for i, x in enumerate(R)]
            side += [(10 + i, f"v_cndmask_b32 v{ft+8+i}, v{ft+8+i}, v{ONES}, s[56:57]") for i in range(4)]
            interleave(a, M[2:], side)
        if w == 0:
            stamp(a, "p1 loop done")
        PV = lambda ww: P1_EX + ww * 3072
        a.label(f"L_{label}_cx{w}")
        a(f"ds_read_b32 v17, v18 offset:{32 + 16}")
        a("s_waitcnt lgkmcnt(0)")
        a("v_readfirstlane_b32 s40, v17")
        a("s_cmp_lt_u32 s40, 4")
        a(f"s_cbranch_scc1 L_{label}_cx{w}")
        a("v_lshlrev_b32 v9, 3, v6")
        a(f"v_add_u32 v9, {PV(w)}, v9")

        def stats(rs, sq, off):
            a(f"v_cndmask_b32 v10, v{sq}, v{sq+1}, s[58:59]")
            a(f"v_cndmask_b32 v10, v10, v{sq+2}, s[60:61]")
            a(f"v_cndmask_b32 v10, v10, v{sq+3}, s[62:63]")
            a(f"v_mul_f32 v11, {1.0/512!r}, v{rs}")
            a(f"v_mul_f32 v10, {1.0/512!r}, v10")
            a("v_fma_f32 v10, -v11, v11, v10")
            a("v_max_f32 v10, 0, v10")
            a("v_add_f32 v10, 0x3727c5ac, v10")
            a("v_rsq_f32 v12, v10")
            a("v_mul_f32 v13, v11, v12")
            a("v_sub_f32 v13, 0, v13")
            a("s_mov_b64 exec, s[84:85]")
            a(f"ds_write_b64 v9, v[12:13] offset:{off}")
            a(f"ds_write_b32 v15, v12 offset:{640 + off}")
            a(f"ds_write_b32 v15, v13 offset:{640 + off + 64}")
            a("s_mov_b64 exec, -1")
        a("v_lshlrev_b32 v15, 2, v6")
        a(f"v_add_u32 v15, {PV(w)}, v15")
        a(f"v_add_u32 v14, {P1_EX}, v1")
        stats(RS, SQ, 0)
        for i, b in enumerate((2, 3, 4, 5)):
            acc = ACC + (b * 2 + 1) * 4
            a(f"ds_write_b128 v14, v[{acc}:{acc+3}] offset:{12288 + w*4096 + i*1024}")
        stats(RS + 4, SQ + 4, 128)
        if w == 3:
            stats(HX, HX + 4, 256)
        if w < 3:
            a(f"ds_write_b128 v14, v[{HX}:{HX+3}] offset:{w*3072 + 1024}")
            if w == 2:
                a(f"ds_write_b128 v14, v[{HX+4}:{HX+7}] offset:{w*3072 + 2048}")
        if w < 2:
            a("v_lshlrev_b32 v11, 4, v5")
            a(f"v_add_u32 v11, {PV(w)}, v11")
            a("s_mov_b64 exec, s[56:57]")
            a(f"ds_write_b128 v11, v[{HX}:{HX+3}] offset:512")
            a(f"ds_write_b128 v11, v[{HX+4}:{HX+7}] offset:576")
            a("s_mov_b64 exec, -1")
        elif w == 2:
            a("v_lshlrev_b32 v11, 2, v6")
            a(f"v_add_u32 v11, {PV(w)}, v11")
            a("s_mov_b64 exec, 0xffff")
            a(f"ds_write_b32 v11, v{HX} offset:512")
            a(f"ds_write_b32 v11, v{HX+4} offset:576")
            a("s_mov_b64 exec, -1")
        SA, SV, CQ, CV, PR = 108, 116, 140, 156, 160
        a("v_lshlrev_b32 v9, 3, v6")
        a("v_lshlrev_b32 v10, 5, v5")
        a("v_lshlrev_b32 v11, 4, v5")
        a("v_lshlrev_b32 v12, 2, v6")
        for r in (9, 10, 11, 12):
            a(f"v_add_u32 v{r}, {P1_EX}, v{r}")
        a("s_waitcnt lgkmcnt(0)")
        if "a1lds" in EXP:
            a("s_mov_b64 exec, 1")
            a("ds_add_u32 v18, v19 offset:100")
            a("s_mov_b64 exec, -1")
            wait_lds(a, f"L_{label}_ca1_{w}", 18, 17, 100, 4)
        else:
            bar(a, "A1")
        rel = lambda ww: ww * 3072
        prev_st = rel(3) + 256 if w == 0 else rel(w - 1) + 128
        for i, off in ((1, rel(w)), (0, prev_st), (2, rel(w) + 128)):
            a(f"ds_read_b64 v[{SA+2*i}:{SA+2*i+1}], v9 offset:{off}")
            if i == 1:
                for hd in range(2):
                    a(f"ds_read_b128 v[{CQ+4*hd}:{CQ+4*hd+3}], v11 offset:{rel(hd) + 576}")
                    a(f"ds_read_b128 v[{CQ+8+4*hd}:{CQ+8+4*hd+3}], v11 offset:{rel(hd) + 512}")
                    a(f"ds_read_b32 v{CV+hd}, v12 offset:{rel(2) + 512 + 64*hd}")
            a(f"ds_read_b128 v[{SV+8*i}:{SV+8*i+3}], v11 offset:{640 + off}")
            a(f"ds_read_b128 v[{SV+8*i+4}:{SV+8*i+7}], v11 offset:{640 + off + 64}")
        if w == 0:
            srcs = (rel(0) + 1024, rel(1) + 1024, rel(2) + 1024, rel(2) + 2048)
        else:
            srcs = tuple(12288 + (w - 1) * 4096 + i * 1024 for i in range(4))
        for i, off in enumerate(srcs):
            a(f"ds_read_b128 v[{PR+4*i}:{PR+4*i+3}], v14 offset:{off}")
        e = a
        PKB = 188
        pk = lambda b, tb: PKB + (b * 3 + tb) * 2
        src = lambda b, tb: PR + 4 * (b - 2) if tb == 0 else ACC + (b * 2 + tb - 1) * 4
        n = 0
        a("s_waitcnt lgkmcnt(10)")
        for tb in (1, 2, 0):
            if tb == 2:
                a("s_waitcnt lgkmcnt(0)")
            for b in range(6):
                if tb == 0 and b < 2:
                    continue
                r0 = src(b, tb)
                t0 = 16 + 4 * (n % 2); n += 1
                if t0 == 20: t0 = 224
                for hh in range(2):
                    d = f"v[{t0+2*hh}:{t0+2*hh+1}]"
                    x = f"v[{r0+2*hh}:{r0+2*hh+1}]"
                    if b < 4:
                        ab = f"v[{SA+2*tb}:{SA+2*tb+1}]"
                        e(f"v_pk_mul_f32 {d}, v[{CQ+4*b+2*hh}:{CQ+4*b+2*hh+1}], {ab} op_sel:[0,1] op_sel_hi:[1,1]")
                        e(f"v_pk_fma_f32 {d}, {x}, {ab}, {d} op_sel_hi:[1,0,1]")
                    else:
                        sel = "op_sel_hi:[1,0]" if b == 4 else "op_sel:[0,1] op_sel_hi:[1,1]"
                        e(f"v_pk_mul_f32 {d}, v[{SV+8*tb+4+2*hh}:{SV+8*tb+4+2*hh+1}], v[{CV}:{CV+1}] {sel}")
                        e(f"v_pk_fma_f32 {d}, {x}, v[{SV+8*tb+2*hh}:{SV+8*tb+2*hh+1}], {d}")
                e(f"v_cvt_pk_bf16_f32 v{pk(b,tb)}, v{t0}, v{t0+1}")
                e(f"v_cvt_pk_bf16_f32 v{pk(b,tb)+1}, v{t0+2}, v{t0+3}")
        SB_, OB_, PB_, OUT = 32, 64, 80, 96
        units = [(t, hd) for t in range(2) for hd in range(2)]
        P2 = lambda r: f"v[{r}:{r+1}]"
        for u, (t, hd) in enumerate(units):
            e(f"v_mfma_f32_16x16x16_bf16 v[{SB_+8*u}:{SB_+8*u+3}], {P2(pk(2+hd, t))}, {P2(pk(hd, t+1))}, 0")
            e(f"v_mfma_f32_16x16x16_bf16 v[{SB_+8*u+4}:{SB_+8*u+7}], {P2(pk(2+hd, t+1))}, {P2(pk(hd, t+1))}, 0")
        MX, SM, TC, CC = 108, 116, 124, 132
        e(f"v_mov_b32 v{CC}, s87")
        for u, (t, hd) in enumerate(units):
            mp = MP0 if (w == 0 and t == 0) else MP
            for q, mk in ((0, mp), (1, MC)):
                for hh in range(2):
                    r = SB_ + 8 * u + 4 * q + 2 * hh
                    e(f"v_pk_fma_f32 v[{r}:{r+1}], v[{r}:{r+1}], v[{CC}:{CC+1}], v[{mk+2*hh}:{mk+2*hh+1}] op_sel_hi:[1,0,1]")
            S = lambda i: f"v{SB_+8*u+i}"
            e(f"v_max3_f32 v{MX+2*u}, {S(0)}, {S(1)}, {S(2)}")
            e(f"v_max3_f32 v{MX+2*u}, v{MX+2*u}, {S(3)}, {S(4)}")
            e(f"v_max3_f32 v{MX+2*u}, v{MX+2*u}, {S(5)}, {S(6)}")
            e(f"v_max_f32 v{MX+2*u}, v{MX+2*u}, {S(7)}")
        for sw in ("v_permlane32_swap_b32", "v_permlane16_swap_b32"):
            for u in range(4):
                e(f"v_mov_b32 v{TC+u}, v{MX+2*u}")
            for u in range(4):
                e(f"{sw} v{MX+2*u}, v{TC+u}")
            for u in range(4):
                e(f"v_max_f32 v{MX+2*u}, v{MX+2*u}, v{TC+u}")
        for u in range(4):
            for i in range(4):
                r = SB_ + 8 * u + 2 * i
                e(f"v_pk_add_f32 v[{r}:{r+1}], v[{r}:{r+1}], v[{MX+2*u}:{MX+2*u+1}] op_sel_hi:[1,0] neg_lo:[0,1] neg_hi:[0,1]")
            for i in range(8):
                e(f"v_exp_f32 v{SB_+8*u+i}, v{SB_+8*u+i}")
        for u in range(4):
            for i in range(4):
                e(f"v_cvt_pk_bf16_f32 v{PB_+4*u+i}, v{SB_+8*u+2*i}, v{SB_+8*u+2*i+1}")
        for u, (t, hd) in enumerate(units):
            e(f"v_mfma_f32_16x16x16_bf16 v[{OB_+4*u}:{OB_+4*u+3}], {P2(pk(4+hd, t))}, {P2(PB_+4*u)}, 0")
        for u, (t, hd) in enumerate(units):
            e(f"v_mfma_f32_16x16x16_bf16 v[{OB_+4*u}:{OB_+4*u+3}], {P2(pk(4+hd, t+1))}, {P2(PB_+4*u+2)}, v[{OB_+4*u}:{OB_+4*u+3}]")
        for u in range(4):
            for i in range(4):
                e(f"v_lshlrev_b32 v{SB_+8*u+2*i}, 16, v{PB_+4*u+i}")
                e(f"v_and_b32 v{SB_+8*u+2*i+1}, 0xffff0000, v{PB_+4*u+i}")
            b0 = SB_ + 8 * u
            e(f"v_pk_add_f32 v[{b0}:{b0+1}], v[{b0}:{b0+1}], v[{b0+2}:{b0+3}]")
            e(f"v_pk_add_f32 v[{b0+4}:{b0+5}], v[{b0+4}:{b0+5}], v[{b0+6}:{b0+7}]")
            e(f"v_pk_add_f32 v[{b0}:{b0+1}], v[{b0}:{b0+1}], v[{b0+4}:{b0+5}]")
            e(f"v_add_f32 v{SM+2*u}, v{b0}, v{b0+1}")
        for sw in ("v_permlane32_swap_b32", "v_permlane16_swap_b32"):
            for u in range(4):
                e(f"v_mov_b32 v{TC+u}, v{SM+2*u}")
            for u in range(4):
                e(f"{sw} v{SM+2*u}, v{TC+u}")
            for u in range(4):
                e(f"v_add_f32 v{SM+2*u}, v{SM+2*u}, v{TC+u}")
        for u in range(4):
            e(f"v_rcp_f32 v{SM+2*u}, v{SM+2*u}")
        for u in range(4):
            for hh in range(2):
                r = OB_ + 4 * u + 2 * hh
                e(f"v_pk_mul_f32 v[{r}:{r+1}], v[{r}:{r+1}], v[{SM+2*u}:{SM+2*u+1}] op_sel_hi:[1,0]")
        a("s_lshl_b32 s38, s29, 17")
        a("s_lshl_b32 s39, s43, 10")
        a("s_add_u32 s38, s38, s39")
        a(f"s_add_u32 s38, s38, {WS_O + 2 * w * 16384}")
        a("s_add_u32 s39, s38, 16384")
        for u, (t, hd) in enumerate(units):
            a(f"v_cvt_pk_bf16_f32 v{OUT+4*t+2*hd}, v{OB_+4*u}, v{OB_+4*u+1}")
            a(f"v_cvt_pk_bf16_f32 v{OUT+4*t+2*hd+1}, v{OB_+4*u+2}, v{OB_+4*u+3}")
        for t in range(2):
            a(f"buffer_store_dwordx4 v[{OUT+4*t}:{OUT+4*t+3}], v1, s[4:7], s{38+t} offen{SC1}")
        if w < 3:
            a(f"s_branch L_{label}_p1join")
    a.label(f"L_{label}_p1join")
    stamp(a, "p1 stored")


def gemm22_setup(a):
    a("s_and_b32 s30, s26, 1")
    a("s_lshr_b32 s31, s26, 1")
    a("s_lshl_b32 s29, s92, 2")
    a("s_lshl_b32 s32, s30, 1")
    a("s_add_u32 s29, s29, s32")
    a("s_add_u32 s33, s29, s31")
    a("s_xor_b32 s32, s31, 1")
    a("s_add_u32 s34, s29, s32")
    a("s_mov_b32 s29, s33")


def gemm22_reduce(a, bar, name, ACC, red_base):
    a("s_xor_b32 s36, s26, 2")
    a("s_lshl_b32 s36, s36, 12")
    a(f"s_add_u32 s36, s36, {red_base}")
    a("v_add_u32 v14, s36, v1")
    a("s_lshl_b32 s36, s26, 12")
    a(f"s_add_u32 s36, s36, {red_base}")
    a("v_add_u32 v15, s36, v1")
    for b in range(4):
        a(f"ds_write_b128 v14, v[{ACC+16+4*b}:{ACC+16+4*b+3}] offset:{b*1024}")
    a("s_waitcnt lgkmcnt(0)")
    bar(a, name)
    for b in range(4):
        a(f"ds_read_b128 v[{ACC+16+4*b}:{ACC+16+4*b+3}], v15 offset:{b*1024}")


P3_AD_ = 7


def c_phase2(a, label, bar):
    FR, TK, ACC, RB = 112, 48, 16, 240
    a(f"v_mov_b32 v14, {LFLAG}")
    wait_lds(a, f"L_{label}_cpl", 14, 15, 128)
    place_from(a, 40)
    gemm22_setup(a)
    tr_addr_perm(a)
    a("s_lshl_b32 s36, s31, 12")
    a("v_add_u32 v12, s36, v12")
    for b in range(4):
        a(f"v_xor_b32 v11, {b}, v8")
        a(f"v_lshl_add_u32 v{248+b}, v11, 5, v12")
    bar(a, "L1")
    for i in range(8):
        for b in range(4):
            for h in range(2):
                r = FR + i * 16 + b * 4 + 2 * h
                a(f"ds_read_b64_tr_b16 v[{r}:{r+1}], v{248+b} offset:{P2_W + i*8192 + h*2048}")
    for i in range(32):
        a(f"v_mov_b32 v{ACC+i}, 0")
    a("v_lshlrev_b32 v7, 10, v6")
    a("v_lshl_add_u32 v7, v5, 3, v7")
    a("s_lshl_b32 s32, s29, 14")
    a("s_lshl_b32 s35, s93, 7")
    a("s_add_u32 s32, s32, s35")
    a("s_lshl_b32 s37, s31, 10")
    a("s_lshl_b32 s33, s33, 14")
    a("s_lshl_b32 s34, s34, 14")
    a(f"s_add_u32 s35, s33, {WS_H}")
    a("s_lshl_b32 s36, s93, 11")
    a("s_add_u32 s35, s35, s36")
    a("s_add_u32 s33, s33, s37")
    a("s_add_u32 s34, s34, s37")
    a("s_waitcnt vmcnt(0) lgkmcnt(0)")
    stamp(a, "p1 drained")
    bar(a, "S1")
    for b in range(4):
        a(f"buffer_load_dwordx2 v[{RB+2*b}:{RB+2*b+1}], v7, s[8:11], s32 offen offset:{b*32}")
    a(f"v_mov_b32 v14, {LFLAG}")
    wait_lds(a, f"L_{label}_cf1", 14, 15, 64 + 4)
    stamp(a, "p2 flags ok")
    for i in range(8):
        for t in range(2):
            if i % 2 == 0 and i:
                a(f"s_add_u32 s{33+t}, s{33+t}, 4096")
            a(f"buffer_load_dwordx4 v[{TK+8*i+4*t}:{TK+8*i+4*t+3}], v1, s[4:7], s{33+t} offen offset:{(i % 2) * 2048}{SC1}")
    for i in range(8):
        a(f"s_waitcnt vmcnt({2 * (7 - i)})")
        if i == 0:
            stamp(a, "p2 first data")
        for t in (1, 0):
            for b in range(4):
                acc = ACC + 16 * t + 4 * b
                a(f"v_mfma_f32_16x16x32_bf16 v[{acc}:{acc+3}], v[{FR+i*16+4*b}:{FR+i*16+4*b+3}], v[{TK+8*i+4*t}:{TK+8*i+4*t+3}], v[{acc}:{acc+3}]")
    gemm22_reduce(a, bar, "R2", ACC, P2_RED)
    TMP = 48
    for b in range(4):
        for r in range(4):
            d = RB + 2 * b + r // 2
            if r % 2 == 0:
                a(f"v_lshlrev_b32 v{TMP+(b*4+r)}, 16, v{d}")
            else:
                a(f"v_and_b32 v{TMP+(b*4+r)}, 0xffff0000, v{d}")
    for i in range(8):
        a(f"v_pk_add_f32 v[{ACC+2*i}:{ACC+2*i+1}], v[{ACC+2*i}:{ACC+2*i+1}], v[{TMP+2*i}:{TMP+2*i+1}]")
    a("s_waitcnt lgkmcnt(0)")
    for i in range(8):
        a(f"v_pk_add_f32 v[{ACC+2*i}:{ACC+2*i+1}], v[{ACC+2*i}:{ACC+2*i+1}], v[{ACC+16+2*i}:{ACC+16+2*i+1}]")
    OB = 64
    for i in range(8):
        a(f"v_cvt_pk_bf16_f32 v{OB+i}, v{ACC+2*i}, v{ACC+2*i+1}")
    for hh in range(2):
        a(f"buffer_store_dwordx4 v[{OB+4*hh}:{OB+4*hh+3}], v1, s[4:7], s35 offen offset:{hh*1024}{SC1}")
    for d in range(8):
        a(f"v_lshlrev_b32 v{TMP+2*d}, 16, v{OB+d}")
        a(f"v_and_b32 v{TMP+2*d+1}, 0xffff0000, v{OB+d}")
    S0 = OB + 8; S1 = S0 + 1
    a(f"v_add_f32 v{S0}, v{TMP}, v{TMP+1}")
    a(f"v_mul_f32 v{S1}, v{TMP}, v{TMP}")
    a(f"v_fmac_f32 v{S1}, v{TMP+1}, v{TMP+1}")
    for i in range(2, 16):
        a(f"v_add_f32 v{S0}, v{S0}, v{TMP+i}")
        a(f"v_fmac_f32 v{S1}, v{TMP+i}, v{TMP+i}")
    C0, C1 = S0 + 2, S0 + 3
    for sw in ("v_permlane32_swap_b32", "v_permlane16_swap_b32"):
        a(f"v_mov_b32 v{C0}, v{S0}")
        a(f"v_mov_b32 v{C1}, v{S1}")
        a(f"{sw} v{S0}, v{C0}")
        a(f"{sw} v{S1}, v{C1}")
        a(f"v_add_f32 v{S0}, v{S0}, v{C0}")
        a(f"v_add_f32 v{S1}, v{S1}, v{C1}")
    a("v_lshlrev_b32 v14, 3, v6")
    a("s_lshl_b32 s39, s29, 10")
    a("s_lshl_b32 s40, s93, 7")
    a("s_add_u32 s39, s39, s40")
    a(f"s_add_u32 s39, s39, {WS_STATS}")
    a("s_mov_b64 exec, 0xffff")
    a(f"buffer_store_dwordx2 v[{S0}:{S1}], v14, s[4:7], s39 offen{SC1}")
    a("s_mov_b64 exec, -1")
    stamp(a, "p2 stored")
    a("s_waitcnt vmcnt(0)")
    stamp(a, "p2 drained")
    bar(a, "S2")


def c_phase3(a, label, bar):
    NS, D = 16, 4
    cA = -2.0 * 0.7978845608028654 * 1.4426950408889634
    AD = P3_AD_
    ACC, FB, TK, AB = 16, 128, 184, 248
    tr_addr_perm(a)
    for b in range(3):
        a(f"v_xor_b32 v11, {b}, v8")
        a(f"v_lshl_add_u32 v{243+b}, v11, 5, v12")
        a(f"v_add_u32 v{240+b}, {P3_G}, v{243+b}")
    a("v_xor_b32 v11, 3, v8")
    a("v_lshl_add_u32 v12, v11, 5, v9")
    a("v_and_b32 v11, 1, v10")
    a("v_lshl_add_u32 v12, v11, 3, v12")
    a("v_lshrrev_b32 v11, 1, v10")
    a("v_xor_b32 v11, 1, v11")
    a(f"v_mul_u32_u24 v11, {P3_G}, v11")
    a("v_add_u32 v246, v11, v12")
    for b in range(7):
        a(f"v_mov_b32 v{AD+b}, v{240+b}")
    a(f"v_mov_b32 v14, v{AD}")
    a(f"v_mov_b32 v15, v{AD+4}")
    for w in range(1, 4):
        a(f"s_cmp_eq_u32 s26, {w}")
        a("s_cselect_b64 vcc, -1, 0")
        a(f"v_cndmask_b32 v14, v14, v{AD+w}, vcc")
        a(f"v_cndmask_b32 v15, v15, v{AD+min(w+4,6)}, vcc")
    CF, CA, ONES = 112, 16, 24
    for s in range(16):
        for q in range(2):
            for h in range(2):
                r = CF + s * 8 + q * 4 + 2 * h
                a(f"ds_read_b64_tr_b16 v[{r}:{r+1}], v{14+q} offset:{s*4096 + h*2048}")
    for i in range(8):
        a(f"v_mov_b32 v{CA+i}, 0")
    for i in range(4):
        a(f"v_mov_b32 v{ONES+i}, 0x3f803f80")
    a("s_waitcnt lgkmcnt(0)")
    for s in range(16):
        for q in range(2):
            a(f"v_mfma_f32_16x16x32_bf16 v[{CA+4*q}:{CA+4*q+3}], v[{CF+s*8+4*q}:{CF+s*8+4*q+3}], v[{ONES}:{ONES+3}], v[{CA+4*q}:{CA+4*q+3}]")
    a("s_lshl_b32 s35, s26, 6")
    a(f"s_add_u32 s35, s35, {P3_CS}")
    a("v_lshlrev_b32 v14, 4, v5")
    a("v_add_u32 v15, s35, v14")
    a(f"v_add_u32 v14, {P3_CS}, v14")
    a("s_mov_b32 exec_lo, 0x00010001")
    a("s_mov_b32 exec_hi, 0x00010001")
    a(f"ds_write_b128 v15, v[{CA}:{CA+3}]")
    a(f"ds_write_b128 v15, v[{CA+4}:{CA+7}] offset:256")
    a("s_mov_b64 exec, -1")

    def reads(s):
        fb = FB + 28 * (s % 2)
        return [f"ds_read_b64_tr_b16 v[{fb+4*b+2*h}:{fb+4*b+2*h+1}], v{AD+b} offset:{s*4096 + h*2048}"
                for b in range(7) for h in range(2)]
    for x in reads(0):
        a(x)
    a("s_lshl_b32 s29, s94, 18")
    a("s_lshl_b32 s30, s26, 16")
    a("s_add_u32 s29, s29, s30")
    a(f"s_add_u32 s30, s29, {WS_H}")
    a("v_lshlrev_b32 v15, 3, v6")
    a("v_lshl_add_u32 v15, v5, 7, v15")
    a("s_lshl_b32 s33, s94, 14")
    a("s_lshl_b32 s34, s26, 12")
    a("s_add_u32 s33, s33, s34")
    a(f"s_add_u32 s33, s33, {WS_STATS}")
    a("s_waitcnt lgkmcnt(0)")
    stamp(a, "p3 colsum")
    a(f"v_mov_b32 v248, {LFLAG}")
    a("v_mov_b32 v249, 1")
    a("s_mov_b64 exec, 1")
    a("ds_add_u32 v248, v249 offset:96")
    a("s_mov_b64 exec, -1")
    wait_lds(a, f"L_{label}_cf2", 248, 249, 64 + 8)
    stamp(a, "p3 flags ok")
    vm = VM()

    def tok(s):
        slot = s % D
        return [f"s_add_u32 s32, s30, {t * 16384 + (s // 4) * 4096}\n"
                f"buffer_load_dwordx4 v[{TK+slot*16+4*t}:{TK+slot*16+4*t+3}], v1, s[4:7], s32 offen offset:{(s % 4) * 1024}{SC1}"
                for t in range(4)]
    for s in range(D):
        for x in tok(s):
            a(x); vm.add(("t", s))
    STR = TK
    for s in range(NS):
        slot = s % D
        fb = FB + 28 * (s % 2)
        a("s_waitcnt lgkmcnt(0)")
        vm.wait_for(a, lambda t: t[0] == "t" and t[1] <= s)
        if s == 0:
            stamp(a, "p3 first data")
        if "p3ts" in EXP and s in (2, 4, 6, 8, 10, 12, 14):
            stamp(a, f"p3 s{s}")
        if s == 15:
            wait_lds(a, f"L_{label}_ccs", 248, 249, 96, 4)
        M = []
        for t in range(4):
            for b in range(7):
                acc = ACC + (b * 4 + t) * 4
                csrc = "0" if s == 0 else f"v[{acc}:{acc+3}]"
                M.append(f"v_mfma_f32_16x16x32_bf16 v[{acc}:{acc+3}], v[{fb+4*b}:{fb+4*b+3}], v[{TK+slot*16+4*t}:{TK+slot*16+4*t+3}], {csrc}")
        R = reads(s + 1) if s + 1 < NS else []
        side = [(i, x) for i, x in enumerate(R)]
        if s + D < NS:
            side += [(7 * t + 6, x) for t, x in enumerate(tok(s + D))]
            for _ in range(4):
                vm.add(("t", s + D))
        if s == 12:
            for t in range(4):
                for q in range(2):
                    side.append((7 * t + 6, f"buffer_load_dwordx2 v[{STR+4*t+2*q}:{STR+4*t+2*q+1}], v15, s[4:7], s33 offen offset:{t*1024 + q*512}{SC1}"))
                    vm.add(("st", 0))
        if s == 15:
            side += [(b, f"ds_read_b128 v[{FB+4*b}:{FB+4*b+3}], v14 offset:{b*64}") for b in range(7)]
            sv = ["s_waitcnt vmcnt(0)"]
            for t in range(4):
                r = STR + 4 * t
                sv += [f"v_add_f32 v{r}, v{r}, v{r+2}", f"v_add_f32 v{r+1}, v{r+1}, v{r+3}"]
            for sw in ("v_permlane32_swap_b32", "v_permlane16_swap_b32"):
                for t in range(4):
                    r = STR + 4 * t
                    sv += [f"v_mov_b32 v{r+2}, v{r}", f"v_mov_b32 v{r+3}, v{r+1}"]
                for t in range(4):
                    r = STR + 4 * t
                    sv += [f"{sw} v{r}, v{r+2}", f"{sw} v{r+1}, v{r+3}"]
                for t in range(4):
                    r = STR + 4 * t
                    sv += [f"v_add_f32 v{r}, v{r}, v{r+2}", f"v_add_f32 v{r+1}, v{r+1}, v{r+3}"]
            for t in range(4):
                r = STR + 4 * t
                sv += [f"v_mul_f32 v{r}, {-1.0/512!r}, v{r}", f"v_mul_f32 v{r+1}, {1.0/512!r}, v{r+1}",
                       f"v_fma_f32 v{r+1}, -v{r}, v{r}, v{r+1}", f"v_max_f32 v{r+1}, 0, v{r+1}",
                       f"v_add_f32 v{r+2}, 0x3727c5ac, v{r+1}", f"v_rsq_f32 v{r+1}, v{r+2}",
                       f"v_mov_b32 v{r+3}, v{r}",
                       f"v_mul_f32 v{r}, {f2h(cA)}, v{r+1}", f"v_mul_f32 v{AB}, v{r+1}, v{r+1}",
                       f"v_mul_f32 v{r+1}, v{AB}, v{r}", f"v_mul_f32 v{r+1}, {f2h(0.044715)}, v{r+1}"]
            side += spread(sv, 0, 28)
        interleave(a, M, side)
    stamp(a, "p3 loop done")
    a("s_waitcnt lgkmcnt(0)")
    bar(a, "A3")
    CSR = FB
    T = 156
    KA_, KB_ = 204, 206
    cA = -2.0 * 0.7978845608028654 * 1.4426950408889634
    cB = cA * 0.044715
    e = a
    e("s_mov_b32 s56, 0")
    e("s_mov_b32 s57, -1")
    e("v_and_b32 v8, 1, v5")
    e("v_lshlrev_b32 v8, 8, v8")
    e("v_lshl_add_u32 v8, v6, 4, v8")
    e("v_lshrrev_b32 v9, 1, v5")
    e(f"v_mul_u32_u24 v10, {56*1024}, v9")
    e("v_add_u32 v8, v10, v8")
    e("v_and_b32 v11, 1, v5")
    e("v_lshl_add_u32 v9, v11, 1, v9")
    e(f"v_mul_u32_u24 v9, {56*1024}, v9")
    e("v_lshl_add_u32 v9, v6, 4, v9")
    e(f"s_mul_i32 s36, s94, {16 * 56 * 1024}")
    e(f"s_mul_i32 s37, s26, {4 * 56 * 1024}")
    e("s_add_u32 s36, s36, s37")
    e(f"s_mul_i32 s37, s95, {7 * 256}")
    e("s_add_u32 s36, s36, s37")
    e(f"s_add_u32 s36, s36, {WS_ACT}")

    def scale(r0, t):
        b = (r0 - ACC) // 16
        for h in range(2):
            e(f"v_pk_fma_f32 v[{r0+2*h}:{r0+2*h+1}], v[{CSR+4*b+2*h}:{CSR+4*b+2*h+1}], v[{STR+4*t+2}:{STR+4*t+3}], v[{r0+2*h}:{r0+2*h+1}] op_sel:[0,1,0] op_sel_hi:[1,1,1]")

    def geglu(gr, ur, outr, tb, kc):
        k1 = f"v[{kc}:{kc+1}]"; k2 = f"v[{kc+2}:{kc+3}]"
        for h in range(2):
            g = f"v[{gr+2*h}:{gr+2*h+1}]"
            t1 = f"v[{tb+4*h}:{tb+4*h+1}]"
            e(f"v_pk_mul_f32 {t1}, {g}, {g}")
            e(f"v_pk_fma_f32 {t1}, {t1}, {k1}, {k1} op_sel:[0,1,0] op_sel_hi:[1,1,0]")
            e(f"v_pk_mul_f32 {t1}, {t1}, {g}")
        for h in range(2):
            for x in range(2):
                e(f"v_exp_f32 v{tb+4*h+x}, v{tb+4*h+x}")
        for h in range(2):
            e(f"v_pk_mul_f32 v[{tb+4*h+2}:{tb+4*h+3}], v[{gr+2*h}:{gr+2*h+1}], v[{ur+2*h}:{ur+2*h+1}]")
            e(f"v_pk_fma_f32 v[{tb+4*h}:{tb+4*h+1}], v[{tb+4*h}:{tb+4*h+1}], {k2}, {k2} op_sel_hi:[1,0,0]")
        for h in range(2):
            for x in range(2):
                e(f"v_rcp_f32 v{tb+4*h+x}, v{tb+4*h+x}")
        for h in range(2):
            e(f"v_pk_mul_f32 v[{tb+4*h}:{tb+4*h+1}], v[{tb+4*h}:{tb+4*h+1}], v[{tb+4*h+2}:{tb+4*h+3}]")
        for h in range(2):
            e(f"v_cvt_pk_bf16_f32 v{outr+h}, v{tb+4*h}, v{tb+4*h+1}")

    A_ = lambda b, t: ACC + (b * 4 + t) * 4
    OA, OBB, OC = 208, 224, 232
    n = 0
    for t in range(4):
        for p in range(2):
            scale(A_(p, t), t); scale(A_(3 + p, t), t)
            geglu(A_(p, t), A_(3 + p, t), OA + 4 * t + 2 * p, T + 8 * (n % 3), STR + 4 * t); n += 1
        e(f"s_add_u32 s37, s36, {t * 56 * 1024}")
        e(f"buffer_store_dwordx4 v[{OA+4*t}:{OA+4*t+3}], v1, s[4:7], s37 offen{SC1}")
    for t in range(4):
        scale(A_(2, t), t); scale(A_(5, t), t)
        geglu(A_(2, t), A_(5, t), OBB + 4 * (t // 2) + 2 * (t % 2), T + 8 * (n % 3), STR + 4 * t); n += 1
        if t % 2 == 1:
            o = OBB + 4 * (t // 2)
            e(f"v_permlane32_swap_b32 v{o}, v{o+2}")
            e(f"v_permlane32_swap_b32 v{o+1}, v{o+3}")
            e(f"s_add_u32 s37, s36, {(t - 1) * 56 * 1024}")
            e(f"buffer_store_dwordx4 v[{o}:{o+3}], v8, s[4:7], s37 offen offset:1024{SC1}")
    for t in range(4):
        scale(A_(6, t), t)
    for t0 in (0, 2):
        for r in range(4):
            e(f"v_permlane32_swap_b32 v{A_(6, t0)+r}, v{A_(6, t0+1)+r}")
        for k in range(3):
            e(f"v_cndmask_b32 v{STR+4*t0+k}, v{STR+4*t0+k}, v{STR+4*t0+4+k}, s[56:57]")
        geglu(A_(6, t0), A_(6, t0 + 1), OC + t0, T + 8 * (n % 3), STR + 4 * t0); n += 1
    e(f"v_permlane16_swap_b32 v{OC}, v{OC+2}")
    e(f"v_permlane16_swap_b32 v{OC+1}, v{OC+3}")
    e(f"buffer_store_dwordx4 v[{OC}:{OC+3}], v9, s[4:7], s36 offen offset:1536{SC1}")
    stamp(a, "p3 stored")


def c_phase4(a, label, bar):
    NI, D = 28, 7
    ACC, FR, TK, AD, RB = 16, 48, 176, 236, 248
    gemm22_setup(a)
    a("v_bfe_u32 v12, v4, 2, 2")
    a("v_lshl_add_u32 v13, v5, 3, v12")
    a("v_lshlrev_b32 v13, 7, v13")
    a("v_and_b32 v14, 3, v4")
    a("v_lshl_add_u32 v13, v14, 3, v13")
    a("s_lshl_b32 s36, s31, 12")
    a("v_add_u32 v13, s36, v13")
    a("v_lshrrev_b32 v12, 1, v12")
    a("v_and_b32 v14, 1, v5")
    a("v_lshl_add_u32 v12, v14, 1, v12")
    for b in range(4):
        a(f"v_xor_b32 v14, {b}, v12")
        a(f"v_lshl_add_u32 v{AD+b}, v14, 5, v13")
        a(f"v_add_u32 v{AD+4+b}, 65536, v{AD+b}")
        a(f"v_add_u32 v{AD+8+b}, 131072, v{AD+b}")

    def rd(i):
        pos = (i % 20) * 8192
        base = AD + 4 * (pos // 65536)
        off = pos % 65536
        dst = FR + (i % 8) * 16
        return [f"ds_read_b64_tr_b16 v[{dst+4*b+2*h}:{dst+4*b+2*h+1}], v{base+b} offset:{off + h*512}"
                for b in range(4) for h in range(2)]
    bar(a, "L3")
    for i in range(8):
        for x in rd(i):
            a(x)
    a("s_waitcnt vmcnt(0)")
    stamp(a, "p3 drained")
    for i in range(32):
        a(f"v_mov_b32 v{ACC+i}, 0")
    srd(a, 20, 78, 2048 * 1024)
    a("v_lshlrev_b32 v7, 10, v6")
    a("v_lshl_add_u32 v7, v5, 3, v7")
    a("s_lshl_b32 s32, s29, 14")
    a("s_lshl_b32 s35, s93, 7")
    a("s_add_u32 s32, s32, s35")
    a("s_lshl_b32 s35, s29, 14")
    a("s_lshl_b32 s36, s93, 11")
    a("s_add_u32 s35, s35, s36")
    a(f"s_add_u32 s35, s35, {WS_H}")
    a("s_lshl_b32 s37, s31, 10")
    a(f"s_add_u32 s37, s37, {WS_ACT}")
    a(f"s_mul_i32 s33, s33, {56 * 1024}")
    a(f"s_mul_i32 s34, s34, {56 * 1024}")
    a("s_add_u32 s33, s33, s37")
    a("s_add_u32 s34, s34, s37")
    a("s_waitcnt lgkmcnt(0)")
    bar(a, "S3")
    for hh in range(2):
        a(f"buffer_load_dwordx4 v[{RB+4*hh}:{RB+4*hh+3}], v1, s[4:7], s35 offen offset:{hh*1024}{SC1}")
    bar(a, "F3")
    stamp(a, "p4 flags ok")
    vm = VM()

    def tok(i):
        out = []
        for t in range(2):
            r = TK + 8 * (i % D) + 4 * t
            pre = f"s_add_u32 s{33+t}, s{33+t}, 4096\n" if (i % 2 == 0 and i) else ""
            out.append(pre + f"buffer_load_dwordx4 v[{r}:{r+3}], v1, s[4:7], s{33+t} offen offset:{(i % 2) * 2048}{SC1}")
        return out
    for i in range(D):
        for x in tok(i):
            a(x); vm.add(i)
    for i in range(NI):
        if i >= 8:
            a("s_waitcnt lgkmcnt(8)" if i + 8 <= NI else "s_waitcnt lgkmcnt(0)")
        vm.wait_for(a, lambda t: t <= i)
        if i == 0:
            stamp(a, "p4 first data")
        if i == 8:
            bar(a, "M4")
        M = []
        for b in range(4):
            for t in range(2):
                acc = ACC + 16 * t + 4 * b
                fr = FR + (i % 8) * 16 + 4 * b
                r = TK + 8 * (i % D) + 4 * t
                M.append(f"v_mfma_f32_16x16x32_bf16 v[{acc}:{acc+3}], v[{fr}:{fr+3}], v[{r}:{r+3}], v[{acc}:{acc+3}]")
        side = []
        if i + 8 < NI:
            side += [(2 * (k // 2) + 1, x) for k, x in enumerate(rd(i + 8))]
        if i + D < NI:
            side += [(7, x) for x in tok(i + D)]
            vm.add(i + D); vm.add(i + D)
        interleave(a, M, side)
    stamp(a, "p4 loop done")
    bar(a, "Q4")
    gemm22_reduce(a, bar, "R4", ACC, 0)
    TMP = 48
    for b in range(4):
        for r in range(4):
            d = RB + 2 * b + r // 2
            if r % 2 == 0:
                a(f"v_lshlrev_b32 v{TMP+(b*4+r)}, 16, v{d}")
            else:
                a(f"v_and_b32 v{TMP+(b*4+r)}, 0xffff0000, v{d}")
    for i in range(8):
        a(f"v_pk_add_f32 v[{ACC+2*i}:{ACC+2*i+1}], v[{ACC+2*i}:{ACC+2*i+1}], v[{TMP+2*i}:{TMP+2*i+1}]")
    a("s_waitcnt lgkmcnt(0)")
    for i in range(8):
        a(f"v_pk_add_f32 v[{ACC+2*i}:{ACC+2*i+1}], v[{ACC+2*i}:{ACC+2*i+1}], v[{ACC+16+2*i}:{ACC+16+2*i+1}]")
    OB = 64
    for i in range(8):
        a(f"v_cvt_pk_bf16_f32 v{OB+i}, v{ACC+2*i}, v{ACC+2*i+1}")
    for b in range(4):
        a(f"buffer_store_dwordx2 v[{OB+2*b}:{OB+2*b+1}], v7, s[20:23], s32 offen offset:{b*32}" + (" sc1" if "outsc1" in EXP else (" nt" if "outnt" in EXP else "")))


def mega(label):
    a = Asm()
    common(a, label)
    bc, bh = Bars(), Bars()
    c_phase1(a, label, bc)
    c_phase2(a, label, bc)
    c_phase3(a, label, bc)
    c_phase4(a, label, bc)
    if TIMESTAMPS:
        a("s_waitcnt vmcnt(0)")
        stamp(a, "end")
        a("s_cmp_lg_u32 s26, 0")
        a(f"s_cbranch_scc1 L_end_{label}")
        if "dbgts" in EXP:
            a("s_cmp_lg_u32 s2, 133")
            a(f"s_cbranch_scc1 L_end_{label}")
            a("v_readlane_b32 s92, v2, 0")
            srd(a, 20, 80, 256)
            a("v_subrev_u32 v252, s92, v2")
            a("v_lshlrev_b32 v251, 2, v4")
            a("v_subrev_u32 v251, 12, v251")
            a(f"s_mov_b64 exec, {hex(((1 << 19) - 1) & ~15)}")
            a("buffer_store_dword v252, v251, s[20:23], 0 offen")
            a("s_endpgm")
        a("v_readlane_b32 s92, v2, 0")
        a("v_readlane_b32 s93, v3, 0")
        a("v_mov_b32 v252, s92\nv_mov_b32 v253, s93\nv_mov_b32 v254, v2\nv_mov_b32 v255, v3")
        a("v_lshlrev_b32 v251, 12, v4")
        a("s_lshl_b32 s92, s2, 4")
        a(f"s_add_u32 s92, s92, {WS_TS}")
        a(f"s_mov_b64 exec, {(1 << len(STAMPS)) - 1}")
        a("buffer_store_dwordx4 v[252:255], v251, s[4:7], s92 offen")
        print("stamps:", list(enumerate(STAMPS)))
    a.label(f"L_end_{label}")
    a("s_endpgm")
    helper(a, label, bh)
    assert bc.seq == bh.seq, (bc.seq, bh.seq)
    return a


def build(fn):
    label = f"{NAME}_kernel"
    a = mega(label)
    o = open(f"cdna_kernels/{NAME}.s.ref").read().split("; Override launch")[0].rstrip("\n").split("\n")
    o.append("; @launch grid=(256,1,1) block=(512,1,1) lds=163840")
    o += ['.amdgcn_target "amdgcn-amd-amdhsa--gfx950"', ".text",
          f".globl {label}", ".p2align 8", f".type {label},@function", f"{label}:"]
    o += a.lines
    o += ['.section .rodata,"a"', ".p2align 6", f".amdhsa_kernel {label}",
          "  .amdhsa_next_free_vgpr 256", "  .amdhsa_next_free_sgpr 102", "  .amdhsa_accum_offset 256",
          "  .amdhsa_group_segment_fixed_size 0", "  .amdhsa_kernarg_size 80", "  .amdhsa_user_sgpr_count 2",
          "  .amdhsa_user_sgpr_kernarg_segment_ptr 1", "  .amdhsa_system_sgpr_workgroup_id_x 1",
          ".end_amdhsa_kernel"]
    open(fn, "w").write("\n".join(o) + "\n")


if __name__ == "__main__":
    import argparse
    ap = argparse.ArgumentParser()
    ap.add_argument("--ts", action="store_true")
    ap.add_argument("--exp", default="")
    ap.add_argument("-o", default=f"cdna_kernels/{NAME}.s")
    args = ap.parse_args()
    TIMESTAMPS = args.ts
    EXP = set(args.exp.split(",")) if args.exp else set()
    for e in EXP:
        if e.startswith("warmat"): WARM_AT = int(e[6:])
    build(args.o)
```

```python
import sys, math, struct
sys.path.insert(0, "tools")
from dsl import Asm

NAME = "sequential_preLN__sliding_local_dilated__geglu_ffn__prompt"
WS_O = 0
WS_H = 2 << 20
WS_ACT = 4 << 20
WS_STATS = 12 << 20
WS_FLAG = 13 << 20
WS_TS = 128 << 20
WS_SIZE = 268435456

TIMESTAMPS = False
EXP = set()
STAMPS = []
SC1 = " sc1"

P1_H, P1_RING, P1_SLOT, P1_NSLOT = 0, 16384, 28672, 5
P1_EX = 131328
P2_W = 0
P2_RED = 131328
P3_G, P3_U, P3_CS = 65552, 0, 148480
GATE_EARLY = 16
LFLAG = 163584
WARM_AT = 7


def f2h(x):
    return "0x%08x" % struct.unpack("<I", struct.pack("<f", x))[0]


def srd(a, r, src, size):
    a(f"s_mov_b32 s{r}, s{src}")
    a(f"s_and_b32 s{r+1}, s{src+1}, 0xffff")
    a(f"s_mov_b32 s{r+2}, {size}")
    a(f"s_mov_b32 s{r+3}, 0x00020000")


def stamp(a, name):
    if not TIMESTAMPS:
        return
    if name in STAMPS:
        i = STAMPS.index(name)
    else:
        i = len(STAMPS); STAMPS.append(name)
    a("s_memtime s[96:97]" if "cyc" in EXP else "s_memrealtime s[96:97]")
    a("s_waitcnt lgkmcnt(0)")
    a(f"v_writelane_b32 v2, s96, {i}")
    a(f"v_writelane_b32 v3, s97, {i}")


def interleave(a, main, side):
    ext = {}
    for pos, t in side:
        ext.setdefault(min(pos, len(main) - 1), []).append(t)
    for t in ext.get(-1, []):
        a(t)
    for i, m in enumerate(main):
        a(m)
        for t in ext.get(i, []):
            a(t)


def spread(items, start, end):
    n = len(items)
    return [(start + (i * (end - start)) // max(n, 1), t) for i, t in enumerate(items)]


class VM:
    def __init__(self):
        self.order = []

    def add(self, tag):
        self.order.append(tag)

    def wait_for(self, a, pred):
        idx = [i for i, t in enumerate(self.order) if pred(t)]
        if not idx:
            return
        n = len(self.order) - 1 - max(idx)
        a(f"s_waitcnt vmcnt({min(n, 63)})")


class Bars:
    def __init__(self):
        self.seq = []

    def __call__(self, a, name):
        self.seq.append(name)
        a("s_barrier")


def common(a, label):
    stamp(a, "start")
    a("s_load_dwordx16 s[64:79], s[0:1], 0")
    a("s_load_dwordx4 s[80:83], s[0:1], 64")
    a("s_cmp_ge_u32 s2, 256")
    a(f"s_cbranch_scc1 L_end_{label}")
    a("s_and_b32 s24, s2, 7")
    a("s_lshr_b32 s25, s2, 3")
    a("v_lshrrev_b32 v7, 6, v0")
    a("v_and_b32 v4, 63, v0")
    a("v_readfirstlane_b32 s26, v7")
    a("v_lshlrev_b32 v1, 4, v4")
    a("v_lshrrev_b32 v5, 4, v4")
    a("v_and_b32 v6, 15, v4")
    a("s_memrealtime s[90:91]")
    a("s_and_b32 s27, s26, 3")
    a("s_lshr_b32 s28, s25, 3")
    a("s_and_b32 s93, s25, 7")
    a("s_lshr_b32 s29, s24, 1")
    a("s_lshl_b32 s29, s29, 2")
    a("s_add_u32 s29, s29, s28")
    a("s_and_b32 s43, s24, 1")
    a("s_lshl_b32 s43, s43, 3")
    a("s_add_u32 s43, s43, s93")
    a("v_lshlrev_b32 v7, 2, v4")
    a(f"v_add_u32 v7, {LFLAG}, v7")
    a("v_mov_b32 v8, 0")
    a("ds_write_b32 v7, v8")
    a("s_cmp_ge_u32 s26, 4")
    a(f"s_cbranch_scc1 L_{label}_helper")


def place_from(a, sreg):
    a(f"s_and_b32 s24, s{sreg}, 7")
    a(f"s_bfe_u32 s25, s{sreg}, 0x50008")
    a("s_lshr_b32 s28, s25, 3")
    a("s_and_b32 s93, s25, 7")
    a("s_lshl_b32 s92, s24, 2")
    a("s_add_u32 s92, s92, s28")
    a("s_and_b32 s94, s24, 4")
    a("s_add_u32 s94, s94, s28")
    a("s_and_b32 s95, s24, 3")
    a("s_lshl_b32 s95, s95, 3")
    a("s_add_u32 s95, s95, s93")


def FSH():
    return 2 if "dense" in EXP else (4 if "dense16" in EXP else 7)


def flag_store(a, label, phase, tile_sreg):
    a("s_cmp_lg_u32 s26, 4")
    a(f"s_cbranch_scc1 L_{label}_sig{phase}")
    a(f"s_lshl_b32 s40, s{tile_sreg}, {FSH()}")
    a(f"s_add_u32 s40, s40, {WS_FLAG + (phase - 1) * 32768}")
    a("v_mov_b32 v8, s88")
    a("v_mov_b32 v9, 0")
    a("s_mov_b64 exec, 1")
    a("buffer_store_dword v8, v9, s[4:7], s40 offen sc1")
    a("s_mov_b64 exec, -1")
    a.label(f"L_{label}_sig{phase}")


def flag_poll(a, label, phase, first_sreg, n):
    a("s_cmp_lg_u32 s26, 4")
    a(f"s_cbranch_scc1 L_{label}_wt{phase}")
    a("s_mov_b32 s40, 0")
    a(f"v_lshlrev_b32 v8, {FSH()}, v4")
    a(f"s_lshl_b32 s41, s{first_sreg}, {FSH()}")
    a(f"s_add_u32 s41, s41, {WS_FLAG + (phase - 1) * 32768}")
    a(f"s_mov_b64 exec, {hex((1 << n) - 1)}")
    if "pipepoll" in EXP:
        NP = 3
        for k in range(NP - 1):
            a(f"buffer_load_dword v{9+k}, v8, s[4:7], s41 offen sc1")
            a("s_sleep 2")
        a.label(f"L_{label}_pl{phase}")
        for k in range(NP):
            a(f"buffer_load_dword v{9 + (k + NP - 1) % NP}, v8, s[4:7], s41 offen sc1")
            a(f"s_waitcnt vmcnt({NP - 1})")
            a(f"v_cmp_ne_u32 vcc, s88, v{9+k}")
            a(f"s_cbranch_vccz L_{label}_px{phase}")
        a("s_add_u32 s40, s40, 1")
        a("s_cmp_lt_u32 s40, 0x20000")
        a(f"s_cbranch_scc1 L_{label}_pl{phase}")
    else:
        a.label(f"L_{label}_pl{phase}")
        for e_ in EXP:
            if e_.startswith("psleep"): a(f"s_sleep {e_[6:] or 4}")
        a("buffer_load_dword v9, v8, s[4:7], s41 offen sc1")
        a("s_add_u32 s40, s40, 1")
        a("s_waitcnt vmcnt(0)")
        a("v_cmp_ne_u32 vcc, s88, v9")
        if "pmask" in EXP:
            a(f"s_cbranch_vccz L_{label}_px{phase}")
            a("s_mov_b64 exec, vcc")
        a("s_cmp_gt_u32 s40, 0x40000")
        a(f"s_cbranch_scc1 L_{label}_px{phase}")
        a(f"s_cbranch_vccnz L_{label}_pl{phase}")
    a.label(f"L_{label}_px{phase}")
    if phase < 3:
        a("s_mov_b64 exec, 1")
        a(f"ds_write_b32 v31, v19 offset:{64 + 4*phase}")
    a("s_mov_b64 exec, -1")
    a.label(f"L_{label}_wt{phase}")


def wait_lds(a, name, areg, treg, off, val=1):
    a.label(name)
    if "hsleep" in EXP and areg == 31: a("s_sleep 2")
    a(f"ds_read_b32 v{treg}, v{areg} offset:{off}")
    a("s_waitcnt lgkmcnt(0)")
    a(f"v_readfirstlane_b32 s40, v{treg}")
    a(f"s_cmp_lt_u32 s40, {val}")
    a(f"s_cbranch_scc1 {name}")


def helper(a, label, bar):
    a.label(f"L_{label}_helper")
    NSLOT = P1_NSLOT
    a("v_lshrrev_b32 v8, 3, v4")
    a("v_and_b32 v7, 7, v4")
    a("v_xor_b32 v7, v7, v8")
    a("v_lshlrev_b32 v8, 10, v8")
    a("v_lshl_add_u32 v20, v7, 4, v8")
    for j in range(3):
        a(f"v_add_u32 v12, {64*j}, v4")
        a("v_mul_u32_u24 v13, 43691, v12")
        a("v_lshrrev_b32 v13, 19, v13")
        a("v_mul_u32_u24 v14, 12, v13")
        a("v_sub_u32 v14, v12, v14")
        a("v_lshrrev_b32 v15, 1, v14")
        a("v_bfe_u32 v16, v13, 3, 1")
        a("v_sub_u32 v15, v15, v16")
        a("v_add_u32 v16, 6, v15")
        a("v_min_u32 v15, v15, v16")
        a("v_lshrrev_b32 v16, 1, v15")
        a("v_lshlrev_b32 v16, 10, v16")
        a("v_and_b32 v15, 1, v15")
        a("v_lshl_add_u32 v16, v15, 5, v16")
        a("v_and_b32 v14, 1, v14")
        a("v_lshl_add_u32 v16, v14, 4, v16")
        a("v_mul_u32_u24 v13, 3072, v13")
        a(f"v_add_u32 v{21+j}, v13, v16")
    if "rot4" in EXP:
        a("s_and_b32 s42, s25, 3"); a("s_lshl_b32 s42, s42, 1"); a("s_add_u32 s42, s42, s24")
    elif "rot2" in EXP:
        a("s_and_b32 s42, s25, 1"); a("s_lshl_b32 s42, s42, 2"); a("s_add_u32 s42, s42, s24")
    elif "rot8" in EXP:
        a("s_add_u32 s42, s29, s43")
    elif "rotm" in EXP:
        a("s_lshr_b32 s42, s25, 3"); a("s_lshl_b32 s42, s42, 1"); a("s_add_u32 s42, s42, s24")
    elif "rotx" in EXP:
        a("s_mov_b32 s42, s24")
    elif any(e.startswith("rf") for e in EXP):
        A_, B_, C_ = [int(ch) for ch in next(e for e in EXP if e.startswith("rf"))[2:]]
        a(f"s_mul_i32 s42, s29, {A_}")
        a(f"s_mul_i32 s41, s43, {B_}")
        a("s_add_u32 s42, s42, s41")
        a("s_lshr_b32 s41, s43, 3")
        a(f"s_mul_i32 s41, s41, {C_}")
        a("s_add_u32 s42, s42, s41")
    else:
        a("s_add_u32 s42, s29, s43")
    a("s_and_b32 s42, s42, 7")
    if "stride" in EXP:
        a("s_xor_b32 s41, s29, s43" if "strx" in EXP else "s_mov_b32 s41, s43")
        a("s_and_b32 s41, s41, 3")
        a("s_lshl_b32 s41, s41, 1")
        a("s_add_u32 s41, s41, 1")
    else:
        a("s_mov_b32 s41, 1")
    a("s_lshl_b32 s30, s27, 2")
    for i in range(4):
        a(f"s_add_u32 s32, s30, {i}")
        a("v_xor_b32 v12, s32, v4")
        a("v_lshrrev_b32 v13, 3, v12")
        a("v_mul_u32_u24 v13, s41, v13")
        a("v_add_u32 v13, s42, v13")
        a("v_and_b32 v13, 7, v13")
        a("v_and_b32 v12, 7, v12")
        a("v_lshl_add_u32 v12, v13, 3, v12")
        a(f"v_lshlrev_b32 v{24+i}, 4, v12")
    a("s_lshl_b32 s30, s29, 17")
    a("s_lshl_b32 s31, s27, 15")
    a("s_add_u32 s31, s31, s30")
    a("s_lshl_b32 s32, s27, 12")
    a("s_add_u32 s32, s32, s30")
    a("s_sub_u32 s32, s32, 16384")
    a(f"s_mul_i32 s33, s27, {16 * 3072}")
    a("s_lshl_b32 s34, s43, 6")
    a("s_add_u32 s33, s33, s34")
    a("s_lshl_b32 s35, s27, 12")
    a(f"s_add_u32 s35, s35, {P1_RING}")
    a("s_mul_i32 s36, s27, 3072")
    a(f"s_add_u32 s36, s36, {P1_RING + 16384}")
    a("s_lshl_b32 s37, s27, 12")
    a(f"s_add_u32 s37, s37, {P1_H}")
    for c in range(8):
        a(f"s_mul_i32 s{48+c}, s41, {c}")
        a(f"s_add_u32 s{48+c}, s{48+c}, s42")
        a(f"s_and_b32 s{48+c}, s{48+c}, 7")
    a("s_waitcnt lgkmcnt(0)")
    srd(a, 4, 82, WS_SIZE)
    srd(a, 8, 64, 2048 * 1024)
    srd(a, 16, 66, 512 * 3072)
    vm = VM()

    def issue_w(c):
        a(f"s_mul_i32 s38, s{48+c}, {64 * 3072}")
        a("s_add_u32 s38, s38, s33")
        for j in range(3):
            a(f"s_add_u32 m0, s36, {(c % NSLOT) * P1_SLOT + j * 1024}")
            a(f"buffer_load_dwordx4 v{21+j}, s[16:19], s38 offen lds")
            vm.add(("w", c))

    def issue_t(c):
        a(f"s_lshl_b32 s39, s{48+c}, 7")
        a("s_add_u32 s39, s39, s31")
        a(f"s_add_u32 m0, s35, {(c % NSLOT) * P1_SLOT}")
        for i in range(4):
            if i:
                a(f"s_add_u32 s39, s39, {8192 - 1024}")
            a(f"buffer_load_dwordx4 v20, s[8:11], s39 offen offset:{i*1024} lds")
            vm.add(("t", c))

    issue_w(0); issue_t(0)
    a("s_mov_b32 m0, s37")
    for i in range(4):
        a(f"buffer_load_dwordx4 v{24+i}, s[8:11], s32 offen offset:{i*1024} lds")
        vm.add(("h", 0))
    if "late1" not in EXP:
        issue_w(1); issue_t(1)
    if "tlb" in EXP:
        a("v_lshlrev_b32 v40, 18, v4")
        a("v_lshlrev_b32 v41, 15, v4")
        a("s_cmp_lg_u32 s27, 0")
        a(f"s_cbranch_scc1 L_{label}_tl1")
        a("buffer_load_dword v42, v40, s[4:7], 0 offen sc1")
        srd(a, 56, 78, 2048 * 1024)
        a("buffer_load_dword v43, v41, s[56:59], 0 offen")
        a.label(f"L_{label}_tl1")
        a("s_cmp_lg_u32 s27, 1")
        a(f"s_cbranch_scc1 L_{label}_tl2")
        srd(a, 56, 68, 512 * 1024)
        a("buffer_load_dword v42, v41, s[56:59], 0 offen")
        srd(a, 56, 72, 512 * 3584)
        a("buffer_load_dword v43, v41, s[56:59], 0 offen")
        a.label(f"L_{label}_tl2")
        a("s_cmp_lg_u32 s27, 2")
        a(f"s_cbranch_scc1 L_{label}_tl3")
        srd(a, 56, 74, 512 * 3584)
        a("buffer_load_dword v42, v41, s[56:59], 0 offen")
        srd(a, 56, 76, 1792 * 1024)
        a("buffer_load_dword v43, v41, s[56:59], 0 offen")
        a.label(f"L_{label}_tl3")
        a("s_cmp_lg_u32 s27, 3")
        a(f"s_cbranch_scc1 L_{label}_tl4")
        a("buffer_load_dword v42, v41, s[8:11], 0 offen")
        a("buffer_load_dword v43, v41, s[16:19], 0 offen")
        a.label(f"L_{label}_tl4")
        vm.add(("tl", 0)); vm.add(("tl", 0))
    a("s_lshl_b32 s40, s2, 3")
    a("s_add_u32 s40, s40, s26")
    srd(a, 20, 80, 256)
    a("s_cmp_lg_u32 s40, 7")
    a(f"s_cbranch_scc1 L_{label}_noep")
    a("s_max_u32 s90, s90, 1")
    a("v_mov_b32 v17, s90")
    a("v_mov_b32 v18, 0")
    a("s_mov_b64 exec, 1")
    a("buffer_store_dword v17, v18, s[20:23], 0 offen sc1")
    a("s_mov_b64 exec, -1")
    a("s_waitcnt vmcnt(0)")
    a.label(f"L_{label}_noep")
    a(f"v_mov_b32 v31, {LFLAG}")
    a("v_mov_b32 v19, 1")
    a("s_waitcnt lgkmcnt(0)")
    bar(a, "Z")
    a("v_mov_b32 v18, 0")

    def landed(c):
        vm.wait_for(a, lambda t: (t[0] in ("w", "t") and t[1] <= c) or t[0] == "h")
        a("s_mov_b64 exec, 1")
        a(f"ds_add_u32 v31, v19 offset:{4*c}")
        a("s_mov_b64 exec, -1")

    def wait_consumed(c):
        a.label(f"L_{label}_hc{c}")
        if "hsleep" in EXP: a("s_sleep 2")
        a(f"ds_read_b32 v17, v31 offset:{32 + 4*c}")
        a("s_waitcnt lgkmcnt(0)")
        a("v_readfirstlane_b32 s40, v17")
        a("s_cmp_lt_u32 s40, 4")
        a(f"s_cbranch_scc1 L_{label}_hc{c}")
    seq = "L0 I2 L1 I3 I4 L2 C0 I5 L3 C1 I6 L4 C2 I7 L5 L6 L7"
    if "late1" in EXP:
        seq = "L0 I1 I2 L1 I3 L2 I4 C0 I5 L3 C1 I6 L4 C2 I7 L5 L6 L7"
    for op in seq.split():
        c = int(op[1])
        if op[0] == "L":
            landed(c)
        elif op[0] == "C":
            wait_consumed(c)
        else:
            issue_w(c); issue_t(c)
    a("s_lshl_b32 s40, s25, 8")
    a("s_or_b32 s40, s40, s24")
    place_from(a, 40)
    a("v_and_b32 v7, 7, v4")
    a("v_lshlrev_b32 v8, 1, v5")
    a("v_xor_b32 v7, v7, v8")
    a("v_lshrrev_b32 v8, 3, v4")
    a("v_lshlrev_b32 v9, 10, v8")
    a("v_lshl_add_u32 v28, v7, 4, v9")
    a("v_mul_u32_u24 v9, 3584, v8")
    a("v_lshl_add_u32 v29, v7, 4, v9")
    a("s_lshl_b32 s44, s27, 13")
    a("s_lshl_b32 s45, s93, 7")
    a("s_add_u32 s44, s44, s45")
    a(f"s_mul_i32 s45, s27, {8 * 3584}")
    a("s_mul_i32 s46, s95, 112")
    a("s_add_u32 s45, s45, s46")
    a("s_lshl_b32 s46, s27, 10")
    srd(a, 12, 68, 512 * 1024)
    a("s_cmp_lt_u32 s27, 2")
    a("s_cselect_b32 s56, s72, s74")
    a("s_cselect_b32 s57, s73, s75")
    a("s_and_b32 s57, s57, 0xffff")
    a(f"s_mov_b32 s58, {512*3584}")
    a("s_mov_b32 s59, 0x00020000")
    a("s_lshl_b32 s60, s25, 4")
    a("s_and_b32 s61, s27, 1")
    a("s_lshl_b32 s61, s61, 3")
    a("s_add_u32 s60, s60, s61")
    a("s_mul_i32 s60, s60, 3584")
    a("s_and_b32 s61, s24, 3")
    a("s_mul_i32 s61, s61, 896")
    a("s_add_u32 s60, s60, s61")
    a("s_lshl_b32 s61, s25, 14")
    a("s_lshl_b32 s47, s27, 12")
    a("s_add_u32 s61, s61, s47")
    warm = [f"buffer_load_dwordx4 v[{64+4*i}:{64+4*i+3}], v1, s[12:15], s61 offen offset:{i * 1024}" for i in range(4)]
    warm += [f"s_add_u32 s47, s60, {i * 3584}\nbuffer_load_dwordx4 v[{80+4*i}:{80+4*i+3}], v1, s[56:59], s47 offen" for i in range(8)]
    if "nopf" in EXP:
        warm = []
    for x in warm:
        a(x); vm.add(("pf", 0))
    a("v_mov_b32 v18, 0")
    a("buffer_load_dword v30, v18, s[20:23], 0 offen sc1")
    vm.add(("ep", 0))
    srd(a, 16, 72, 512 * 3584)

    def p2_w_dma(i):
        a(f"s_add_u32 m0, s46, {P2_W + i * 4096}")
        a(f"s_add_u32 s47, s44, {32 * i * 1024}")
        a("buffer_load_dwordx4 v28, s[12:15], s47 offen lds")
        vm.add(("w2", i))

    def p3_w_dma(img, i, sr):
        a(f"s_add_u32 m0, s46, {img + i * 4096}")
        a(f"s_add_u32 s47, s45, {32 * i * 3584}")
        a(f"buffer_load_dwordx4 v29, s[{sr}:{sr+3}], s47 offen lds")
        vm.add(("w3", i))
    if "a1lds" in EXP:
        wait_lds(a, f"L_{label}_ha1", 31, 17, 100, 4)
    else:
        bar(a, "A1")
    for i in range(16):
        p2_w_dma(i)
    for i in range(GATE_EARLY):
        p3_w_dma(P3_G, i, 16)
        if "pace" in EXP: a("s_sleep 1")
    vm.wait_for(a, lambda t: t[0] == "w2")
    a("v_readfirstlane_b32 s88, v30")
    a("s_cmp_lg_u32 s88, 0")
    a(f"s_cbranch_scc1 L_{label}_epx")
    a("s_mov_b32 s40, 0")
    a.label(f"L_{label}_ep")
    a("buffer_load_dword v30, v18, s[20:23], 0 offen sc1")
    a("s_add_u32 s40, s40, 1")
    a("s_waitcnt vmcnt(0)")
    a("v_readfirstlane_b32 s88, v30")
    a("s_cmp_gt_u32 s40, 0x40000")
    a(f"s_cbranch_scc1 L_{label}_epx")
    a("s_cmp_eq_u32 s88, 0")
    a(f"s_cbranch_scc1 L_{label}_ep")
    a.label(f"L_{label}_epx")
    a("s_lshl_b32 s89, s29, 4")
    a("s_add_u32 s89, s89, s43")
    srd(a, 12, 74, 512 * 3584)
    bar(a, "S1")
    flag_store(a, label, 1, 89)
    bar(a, "T1")
    a("s_cmp_eq_u32 s26, 4")
    a(f"s_cbranch_scc1 L_{label}_noups")
    a(f"s_sub_u32 s37, s45, {8 * 3584}")
    a("s_sub_u32 s38, s46, 1024")
    for i in range(22):
        if i == 21:
            a("s_cmp_lg_u32 s26, 5")
            a(f"s_cbranch_scc1 L_{label}_noups")
        a(f"s_add_u32 m0, s38, {P3_U + i * 3072}")
        a(f"s_add_u32 s47, s37, {24 * i * 3584}")
        a("buffer_load_dwordx4 v29, s[12:15], s47 offen lds")
    a.label(f"L_{label}_noups")
    a("s_lshr_b32 s89, s92, 1")
    a("s_lshl_b32 s89, s89, 4")
    flag_poll(a, label, 1, 89, 16)
    a("s_waitcnt vmcnt(0)")
    bar(a, "R2")
    srd(a, 12, 76, 1792 * 1024)
    a("v_lshrrev_b32 v12, 3, v4")
    a("v_and_b32 v13, 7, v4")
    a("v_and_b32 v14, 1, v5")
    a("v_lshlrev_b32 v14, 1, v14")
    a("s_and_b32 s44, s27, 1")
    a("s_lshl_b32 s44, s44, 2")
    a("v_xor_b32 v13, v13, v14")
    a("v_xor_b32 v13, s44, v13")
    a("v_lshlrev_b32 v13, 4, v13")
    a("v_lshrrev_b32 v14, 2, v12")
    a("v_lshl_add_u32 v36, v12, 10, v13")
    a("v_lshl_add_u32 v34, v14, 12, v36")
    a("v_mul_u32_u24 v14, 12288, v14")
    a("v_add_u32 v32, v14, v36")
    a("v_xor_b32 v33, 64, v32")
    a("v_xor_b32 v35, 64, v34")
    a("v_xor_b32 v37, 64, v36")
    a("s_lshl_b32 s45, s93, 7")
    a(f"s_mul_i32 s46, s27, {56 * 1024}")
    a("s_add_u32 s45, s45, s46")
    a(f"s_mul_i32 s46, s27, {7 * 1024}")
    a("s_lshl_b32 s89, s92, 3")
    a("s_add_u32 s89, s89, s93")
    bar(a, "S2")
    flag_store(a, label, 2, 89)
    a("s_lshl_b32 s89, s94, 5")
    flag_poll(a, label, 2, 89, 32)
    wait_lds(a, f"L_{label}_hf2", 31, 17, 64 + 8)
    if "nohw" not in EXP:
        a("s_lshl_b32 s40, s94, 18")
        a("s_lshl_b32 s41, s27, 16")
        a("s_add_u32 s40, s40, s41")
        a("s_lshl_b32 s41, s93, 11")
        a("s_add_u32 s40, s40, s41")
        a(f"s_add_u32 s40, s40, {WS_H}")
        for t in range(4):
            for q in range(2):
                a(f"s_add_u32 s41, s40, {t * 16384}")
                a(f"buffer_load_dwordx4 v[{128+8*t+4*q}:{128+8*t+4*q+3}], v1, s[4:7], s41 offen offset:{q*1024}{SC1}")
    if "nopf" not in EXP:
        a("s_sleep 32")
        a(f"s_mul_i32 s40, s25, {56 * 1024}")
        a(f"s_mul_i32 s41, s27, {14 * 1024}")
        a("s_add_u32 s40, s40, s41")
        for i in range(14):
            a(f"s_add_u32 s41, s40, {i * 1024}")
            a(f"buffer_load_dwordx4 v[{64+4*i}:{64+4*i+3}], v1, s[12:15], s41 offen")
            a("s_sleep 4")
    a("s_lshl_b32 s89, s94, 5")
    a("s_add_u32 s89, s89, s95")
    bar(a, "A3")

    def p4_w_dma(i):
        m, j = i // 7, i % 7
        rowbase = 4 * j if j < 4 else (32 + 4 * (j - 4) if j < 6 else 48)
        vreg = 32 + (j % 2) if j < 4 else (34 + (j % 2) if j < 6 else 36)
        a(f"s_add_u32 m0, s46, {(28 * m + j) * 1024}")
        a(f"s_add_u32 s47, s45, {(224 * m + rowbase) * 1024}")
        a(f"buffer_load_dwordx4 v{vreg}, s[12:15], s47 offen lds")
    for i in range(35):
        p4_w_dma(i)
        if "pace" in EXP: a("s_sleep 1")
    a("s_waitcnt vmcnt(14)")
    bar(a, "S3")
    flag_store(a, label, 3, 89)
    a("s_waitcnt vmcnt(0)")
    bar(a, "T3")
    a("s_cmp_eq_u32 s26, 4")
    a(f"s_cbranch_scc1 L_{label}_nolate")
    for i in range(28):
        m, j = i // 7, i % 7
        rowbase = 4 * j if j < 4 else (32 + 4 * (j - 4) if j < 6 else 48)
        par = (j + m + 1) % 2
        vreg = (32 if j < 4 else (34 if j < 6 else 36)) + par
        pos = (140 + 21 * m + j - 7) * 1024
        if m == 0:
            a(f"s_add_u32 s48, s46, {pos}\ns_sub_u32 s49, s48, 163840\ns_min_u32 m0, s48, s49")
        else:
            a(f"s_add_u32 m0, s46, {pos - 163840}")
        a(f"s_add_u32 s47, s45, {(56 * (20 + 3 * m - 1) + rowbase) * 1024}")
        a(f"buffer_load_dwordx4 v{vreg}, s[12:15], s47 offen lds")
    a.label(f"L_{label}_nolate")
    a("s_lshr_b32 s89, s92, 2")
    a("s_lshl_b32 s89, s89, 5")
    flag_poll(a, label, 3, 89, 32)
    bar(a, "F3")
    a("s_waitcnt vmcnt(0)")
    bar(a, "M4")
    bar(a, "Q4")
    bar(a, "R4")
    a("s_endpgm")


def tr_addr_perm(a):
    a("v_bfe_u32 v8, v4, 2, 2")
    a("v_lshl_add_u32 v9, v5, 2, v8")
    a("v_lshlrev_b32 v9, 7, v9")
    a("v_and_b32 v10, 3, v4")
    a("v_lshrrev_b32 v8, 1, v8")
    a("v_and_b32 v11, 1, v5")
    a("v_lshl_add_u32 v8, v11, 1, v8")
    a("v_lshl_add_u32 v12, v10, 3, v9")


def c_phase1(a, label, bar):
    NSLOT = P1_NSLOT
    if "prio" in EXP:
        a("s_setprio 2")
    TA0, HA, WA = 20, 22, 26
    WB, WC, TB0, TC0 = 240, 246, 252, 254
    a("s_lshl_b32 s35, s26, 12")
    a(f"s_add_u32 s35, s35, {P1_RING}")
    a("v_and_b32 v7, 7, v6")
    a("v_xor_b32 v7, v7, v5")
    a("v_lshlrev_b32 v8, 7, v6")
    a("v_lshl_add_u32 v8, v7, 4, v8")
    a(f"v_add_u32 v{TA0}, s35, v8")
    a(f"v_xor_b32 v{TA0+1}, 64, v{TA0}")
    for c1 in range(2):
        for h in range(2):
            a(f"v_add_u32 v7, {8*c1 + 4*h}, v5")
            a("v_xor_b32 v7, v7, v6")
            a("v_lshlrev_b32 v8, 10, v6")
            a("v_lshl_add_u32 v8, v7, 4, v8")
            a(f"v_add_u32 v{HA + 2*c1 + h}, {P1_H}, v8")
    a("v_bfe_u32 v7, v4, 2, 2")
    a("v_lshl_add_u32 v7, v5, 3, v7")
    a("v_mul_u32_u24 v7, 192, v7")
    a("v_and_b32 v8, 3, v4")
    a("v_lshl_add_u32 v7, v8, 3, v7")
    a("v_and_b32 v8, 1, v5")
    for b in range(6):
        a(f"v_add_u32 v12, {b}, v8")
        if b == 5:
            a("v_mul_u32_u24 v13, 6, v8")
            a("v_sub_u32 v12, v12, v13")
        a(f"v_lshl_add_u32 v{WA+b}, v12, 5, v7")
        a(f"v_add_u32 v{WA+b}, {P1_RING + 16384}, v{WA+b}")
        a(f"v_add_u32 v{WB+b}, {2 * P1_SLOT}, v{WA+b}")
        a(f"v_add_u32 v{WC+b}, {4 * P1_SLOT}, v{WA+b}")
    for h in range(2):
        a(f"v_add_u32 v{TB0+h}, {2 * P1_SLOT}, v{TA0+h}")
        a(f"v_add_u32 v{TC0+h}, {4 * P1_SLOT}, v{TA0+h}")
    ACC, RS, SQ, HX, ONES, FW, FT = 32, 80, 88, 96, 104, 108, 156
    MC, MP, MP0 = 228, 232, 236
    for i in range(ACC, ONES):
        a(f"v_mov_b32 v{i}, 0")
    for i in range(4):
        a(f"v_mov_b32 v{ONES+i}, 0x3f803f80")
    a("v_cmp_eq_u32 s[56:57], 0, v6")
    a("v_and_b32 v7, 3, v6")
    a("v_cmp_eq_u32 s[58:59], 1, v7")
    a("v_cmp_eq_u32 s[60:61], 2, v7")
    a("v_cmp_eq_u32 s[62:63], 3, v7")
    a("v_lshrrev_b32 v8, 2, v6")
    a("v_cmp_eq_u32 s[84:85], v8, v5")
    a("v_lshlrev_b32 v14, 2, v5")
    a("v_sub_u32 v14, v6, v14")
    a("v_mov_b32 v15, 0xff800000")
    for r in range(4):
        a(f"v_subrev_u32 v16, {r}, v14")
        a("v_and_b32 v17, 0x80000001, v16")
        a("v_cmp_eq_u32 vcc, 0, v17")
        a(f"v_cndmask_b32 v{MC+r}, v15, 0, vcc")
        a("v_add_u32 v16, 1, v16")
        a("v_and_b32 v17, 0x80000001, v16")
        a("v_xor_b32 v17, 0x80000001, v17")
        a("v_cmp_eq_u32 vcc, 0, v17")
        a(f"v_cndmask_b32 v{MP+r}, v15, 0, vcc")
    a("s_cmp_eq_u32 s29, 0")
    a("s_cselect_b32 s86, 0xff800000, 0")
    for r in range(4):
        a(f"v_add_f32 v{MP0+r}, s86, v{MP+r}")
    a(f"s_mov_b32 s87, {f2h(0.25 * 1.4426950408889634)}")
    a(f"v_mov_b32 v18, {LFLAG}")
    a("v_mov_b32 v19, 1")
    a("s_waitcnt lgkmcnt(0)")
    srd(a, 4, 82, WS_SIZE)
    srd(a, 8, 64, 2048 * 1024)
    bar(a, "Z")
    for w in range(1, 4):
        a(f"s_cmp_eq_u32 s26, {w}")
        a(f"s_cbranch_scc1 L_{label}_w{w}")
    seq0 = list(bar.seq)
    for w in range(4):
        if w:
            a.label(f"L_{label}_w{w}")
        bar.seq[:] = seq0

        def reads(s):
            c, h = s // 2, s % 2
            fw = FW + 24 * (s % 2); ft = FT + 12 * (s % 2)
            slot = c % NSLOT
            ta = (TA0, TB0, TC0)[slot // 2]; wa = (WA, WB, WC)[slot // 2]
            so = (slot % 2) * P1_SLOT
            out = []
            for t in range(2):
                out.append(f"ds_read_b128 v[{ft+4*t}:{ft+4*t+3}], v{ta + h} offset:{so + t * 2048}")
            for b in range(6):
                for h2 in range(2):
                    out.append(f"ds_read_b64_tr_b16 v[{fw+4*b+2*h2}:{fw+4*b+2*h2+1}], v{wa+b} offset:{so + h * 6144 + h2 * 768}")
            out.append(f"ds_read_b128 v[{ft+8}:{ft+11}], v{HA + 2*(c % 2) + h} offset:{(c // 2) * 256}")
            return out

        def wait_landed(c, first):
            L = f"L_{label}_cl{w}_{c}"
            if not first:
                a("v_readfirstlane_b32 s40, v17")
                a("s_cmp_ge_u32 s40, 4")
                a.raw(f"    s_cbranch_scc1 {L}x")
            a.raw(f"{L}:")
            a(f"ds_read_b32 v17, v18 offset:{4*c}")
            a("s_waitcnt lgkmcnt(0)")
            a("v_readfirstlane_b32 s40, v17")
            a("s_cmp_lt_u32 s40, 4")
            a.raw(f"    s_cbranch_scc1 {L}")
            a.raw(f"{L}x:")

        wait_landed(0, True)
        if w == 0:
            stamp(a, "p1 first data")
        for x in reads(0):
            a(x)
        for s in range(16):
            c, h = s // 2, s % 2
            fw = FW + 24 * (s % 2); ft = FT + 12 * (s % 2)
            a("s_waitcnt lgkmcnt(0)")
            W = lambda b: f"v[{fw+4*b}:{fw+4*b+3}]"
            T = lambda t: f"v[{ft+4*t}:{ft+4*t+3}]"
            mf = lambda acc, A, B: f"v_mfma_f32_16x16x32_bf16 v[{acc}:{acc+3}], {A}, {B}, v[{acc}:{acc+3}]"
            M = []
            for t in range(2):
                for b in range(4):
                    M.append(mf(ACC + (b * 2 + t) * 4, W(b), T(t)))
                for b in range(4, 6):
                    M.append(mf(ACC + (b * 2 + t) * 4, T(t), W(b)))
                M.append(mf(RS + 4 * t, f"v[{ONES}:{ONES+3}]", T(t)))
                M.append(mf(SQ + 4 * t, T(t), T(t)))
            if w < 2:
                M += [mf(HX, W(2 + w), T(2)), mf(HX + 4, W(w), T(2))]
            elif w == 2:
                M += [mf(HX, T(2), W(4)), mf(HX + 4, T(2), W(5))]
            else:
                M += [mf(HX, f"v[{ONES}:{ONES+3}]", T(2)), mf(HX + 4, T(2), T(2))]
            a(M[0]); a(M[1])
            if s + 1 < 16:
                if h == 1:
                    if c < 3 or c == 4:
                        a("s_mov_b64 exec, 1")
                        a(f"ds_add_u32 v18, v19 offset:{32 + 4*c}")
                        a("s_mov_b64 exec, -1")
                    wait_landed(c + 1, False)
                    if w == 0 and "chunkts" in EXP: stamp(a, f"c{c+1}")
            R = reads(s + 1) if s + 1 < 16 else []
            if h == 0 and c + 1 < 8:
                R = R + [f"ds_read_b32 v17, v18 offset:{4*(c+1)}"]
            side = [(i * 2 // 3, x) for i, x in enumerate(R)]
            side += [(10 + i, f"v_cndmask_b32 v{ft+8+i}, v{ft+8+i}, v{ONES}, s[56:57]") for i in range(4)]
            interleave(a, M[2:], side)
        if w == 0:
            stamp(a, "p1 loop done")
        PV = lambda ww: P1_EX + ww * 3072
        a.label(f"L_{label}_cx{w}")
        a(f"ds_read_b32 v17, v18 offset:{32 + 16}")
        a("s_waitcnt lgkmcnt(0)")
        a("v_readfirstlane_b32 s40, v17")
        a("s_cmp_lt_u32 s40, 4")
        a(f"s_cbranch_scc1 L_{label}_cx{w}")
        a("v_lshlrev_b32 v9, 3, v6")
        a(f"v_add_u32 v9, {PV(w)}, v9")

        def stats(rs, sq, off):
            a(f"v_cndmask_b32 v10, v{sq}, v{sq+1}, s[58:59]")
            a(f"v_cndmask_b32 v10, v10, v{sq+2}, s[60:61]")
            a(f"v_cndmask_b32 v10, v10, v{sq+3}, s[62:63]")
            a(f"v_mul_f32 v11, {1.0/512!r}, v{rs}")
            a(f"v_mul_f32 v10, {1.0/512!r}, v10")
            a("v_fma_f32 v10, -v11, v11, v10")
            a("v_max_f32 v10, 0, v10")
            a("v_add_f32 v10, 0x3727c5ac, v10")
            a("v_rsq_f32 v12, v10")
            a("v_mul_f32 v13, v11, v12")
            a("v_sub_f32 v13, 0, v13")
            a("s_mov_b64 exec, s[84:85]")
            a(f"ds_write_b64 v9, v[12:13] offset:{off}")
            a(f"ds_write_b32 v15, v12 offset:{640 + off}")
            a(f"ds_write_b32 v15, v13 offset:{640 + off + 64}")
            a("s_mov_b64 exec, -1")
        a("v_lshlrev_b32 v15, 2, v6")
        a(f"v_add_u32 v15, {PV(w)}, v15")
        a(f"v_add_u32 v14, {P1_EX}, v1")
        stats(RS, SQ, 0)
        for i, b in enumerate((2, 3, 4, 5)):
            acc = ACC + (b * 2 + 1) * 4
            a(f"ds_write_b128 v14, v[{acc}:{acc+3}] offset:{12288 + w*4096 + i*1024}")
        stats(RS + 4, SQ + 4, 128)
        if w == 3:
            stats(HX, HX + 4, 256)
        if w < 3:
            a(f"ds_write_b128 v14, v[{HX}:{HX+3}] offset:{w*3072 + 1024}")
            if w == 2:
                a(f"ds_write_b128 v14, v[{HX+4}:{HX+7}] offset:{w*3072 + 2048}")
        if w < 2:
            a("v_lshlrev_b32 v11, 4, v5")
            a(f"v_add_u32 v11, {PV(w)}, v11")
            a("s_mov_b64 exec, s[56:57]")
            a(f"ds_write_b128 v11, v[{HX}:{HX+3}] offset:512")
            a(f"ds_write_b128 v11, v[{HX+4}:{HX+7}] offset:576")
            a("s_mov_b64 exec, -1")
        elif w == 2:
            a("v_lshlrev_b32 v11, 2, v6")
            a(f"v_add_u32 v11, {PV(w)}, v11")
            a("s_mov_b64 exec, 0xffff")
            a(f"ds_write_b32 v11, v{HX} offset:512")
            a(f"ds_write_b32 v11, v{HX+4} offset:576")
            a("s_mov_b64 exec, -1")
        SA, SV, CQ, CV, PR = 108, 116, 140, 156, 160
        a("v_lshlrev_b32 v9, 3, v6")
        a("v_lshlrev_b32 v10, 5, v5")
        a("v_lshlrev_b32 v11, 4, v5")
        a("v_lshlrev_b32 v12, 2, v6")
        for r in (9, 10, 11, 12):
            a(f"v_add_u32 v{r}, {P1_EX}, v{r}")
        a("s_waitcnt lgkmcnt(0)")
        if "a1lds" in EXP:
            a("s_mov_b64 exec, 1")
            a("ds_add_u32 v18, v19 offset:100")
            a("s_mov_b64 exec, -1")
            wait_lds(a, f"L_{label}_ca1_{w}", 18, 17, 100, 4)
        else:
            bar(a, "A1")
        rel = lambda ww: ww * 3072
        prev_st = rel(3) + 256 if w == 0 else rel(w - 1) + 128
        for i, off in ((1, rel(w)), (0, prev_st), (2, rel(w) + 128)):
            a(f"ds_read_b64 v[{SA+2*i}:{SA+2*i+1}], v9 offset:{off}")
            if i == 1:
                for hd in range(2):
                    a(f"ds_read_b128 v[{CQ+4*hd}:{CQ+4*hd+3}], v11 offset:{rel(hd) + 576}")
                    a(f"ds_read_b128 v[{CQ+8+4*hd}:{CQ+8+4*hd+3}], v11 offset:{rel(hd) + 512}")
                    a(f"ds_read_b32 v{CV+hd}, v12 offset:{rel(2) + 512 + 64*hd}")
            a(f"ds_read_b128 v[{SV+8*i}:{SV+8*i+3}], v11 offset:{640 + off}")
            a(f"ds_read_b128 v[{SV+8*i+4}:{SV+8*i+7}], v11 offset:{640 + off + 64}")
        if w == 0:
            srcs = (rel(0) + 1024, rel(1) + 1024, rel(2) + 1024, rel(2) + 2048)
        else:
            srcs = tuple(12288 + (w - 1) * 4096 + i * 1024 for i in range(4))
        for i, off in enumerate(srcs):
            a(f"ds_read_b128 v[{PR+4*i}:{PR+4*i+3}], v14 offset:{off}")
        e = a
        PKB = 188
        pk = lambda b, tb: PKB + (b * 3 + tb) * 2
        src = lambda b, tb: PR + 4 * (b - 2) if tb == 0 else ACC + (b * 2 + tb - 1) * 4
        n = 0
        a("s_waitcnt lgkmcnt(10)")
        for tb in (1, 2, 0):
            if tb == 2:
                a("s_waitcnt lgkmcnt(0)")
            for b in range(6):
                if tb == 0 and b < 2:
                    continue
                r0 = src(b, tb)
                t0 = 16 + 4 * (n % 2); n += 1
                if t0 == 20: t0 = 224
                for hh in range(2):
                    d = f"v[{t0+2*hh}:{t0+2*hh+1}]"
                    x = f"v[{r0+2*hh}:{r0+2*hh+1}]"
                    if b < 4:
                        ab = f"v[{SA+2*tb}:{SA+2*tb+1}]"
                        e(f"v_pk_mul_f32 {d}, v[{CQ+4*b+2*hh}:{CQ+4*b+2*hh+1}], {ab} op_sel:[0,1] op_sel_hi:[1,1]")
                        e(f"v_pk_fma_f32 {d}, {x}, {ab}, {d} op_sel_hi:[1,0,1]")
                    else:
                        sel = "op_sel_hi:[1,0]" if b == 4 else "op_sel:[0,1] op_sel_hi:[1,1]"
                        e(f"v_pk_mul_f32 {d}, v[{SV+8*tb+4+2*hh}:{SV+8*tb+4+2*hh+1}], v[{CV}:{CV+1}] {sel}")
                        e(f"v_pk_fma_f32 {d}, {x}, v[{SV+8*tb+2*hh}:{SV+8*tb+2*hh+1}], {d}")
                e(f"v_cvt_pk_bf16_f32 v{pk(b,tb)}, v{t0}, v{t0+1}")
                e(f"v_cvt_pk_bf16_f32 v{pk(b,tb)+1}, v{t0+2}, v{t0+3}")
        SB_, OB_, PB_, OUT = 32, 64, 80, 96
        units = [(t, hd) for t in range(2) for hd in range(2)]
        P2 = lambda r: f"v[{r}:{r+1}]"
        for u, (t, hd) in enumerate(units):
            e(f"v_mfma_f32_16x16x16_bf16 v[{SB_+8*u}:{SB_+8*u+3}], {P2(pk(2+hd, t))}, {P2(pk(hd, t+1))}, 0")
            e(f"v_mfma_f32_16x16x16_bf16 v[{SB_+8*u+4}:{SB_+8*u+7}], {P2(pk(2+hd, t+1))}, {P2(pk(hd, t+1))}, 0")
        MX, SM, TC, CC = 108, 116, 124, 132
        e(f"v_mov_b32 v{CC}, s87")
        for u, (t, hd) in enumerate(units):
            mp = MP0 if (w == 0 and t == 0) else MP
            for q, mk in ((0, mp), (1, MC)):
                for hh in range(2):
                    r = SB_ + 8 * u + 4 * q + 2 * hh
                    e(f"v_pk_fma_f32 v[{r}:{r+1}], v[{r}:{r+1}], v[{CC}:{CC+1}], v[{mk+2*hh}:{mk+2*hh+1}] op_sel_hi:[1,0,1]")
            S = lambda i: f"v{SB_+8*u+i}"
            e(f"v_max3_f32 v{MX+2*u}, {S(0)}, {S(1)}, {S(2)}")
            e(f"v_max3_f32 v{MX+2*u}, v{MX+2*u}, {S(3)}, {S(4)}")
            e(f"v_max3_f32 v{MX+2*u}, v{MX+2*u}, {S(5)}, {S(6)}")
            e(f"v_max_f32 v{MX+2*u}, v{MX+2*u}, {S(7)}")
        for sw in ("v_permlane32_swap_b32", "v_permlane16_swap_b32"):
            for u in range(4):
                e(f"v_mov_b32 v{TC+u}, v{MX+2*u}")
            for u in range(4):
                e(f"{sw} v{MX+2*u}, v{TC+u}")
            for u in range(4):
                e(f"v_max_f32 v{MX+2*u}, v{MX+2*u}, v{TC+u}")
        for u in range(4):
            for i in range(4):
                r = SB_ + 8 * u + 2 * i
                e(f"v_pk_add_f32 v[{r}:{r+1}], v[{r}:{r+1}], v[{MX+2*u}:{MX+2*u+1}] op_sel_hi:[1,0] neg_lo:[0,1] neg_hi:[0,1]")
            for i in range(8):
                e(f"v_exp_f32 v{SB_+8*u+i}, v{SB_+8*u+i}")
        for u in range(4):
            for i in range(4):
                e(f"v_cvt_pk_bf16_f32 v{PB_+4*u+i}, v{SB_+8*u+2*i}, v{SB_+8*u+2*i+1}")
        for u, (t, hd) in enumerate(units):
            e(f"v_mfma_f32_16x16x16_bf16 v[{OB_+4*u}:{OB_+4*u+3}], {P2(pk(4+hd, t))}, {P2(PB_+4*u)}, 0")
        for u, (t, hd) in enumerate(units):
            e(f"v_mfma_f32_16x16x16_bf16 v[{OB_+4*u}:{OB_+4*u+3}], {P2(pk(4+hd, t+1))}, {P2(PB_+4*u+2)}, v[{OB_+4*u}:{OB_+4*u+3}]")
        for u in range(4):
            for i in range(4):
                e(f"v_lshlrev_b32 v{SB_+8*u+2*i}, 16, v{PB_+4*u+i}")
                e(f"v_and_b32 v{SB_+8*u+2*i+1}, 0xffff0000, v{PB_+4*u+i}")
            b0 = SB_ + 8 * u
            e(f"v_pk_add_f32 v[{b0}:{b0+1}], v[{b0}:{b0+1}], v[{b0+2}:{b0+3}]")
            e(f"v_pk_add_f32 v[{b0+4}:{b0+5}], v[{b0+4}:{b0+5}], v[{b0+6}:{b0+7}]")
            e(f"v_pk_add_f32 v[{b0}:{b0+1}], v[{b0}:{b0+1}], v[{b0+4}:{b0+5}]")
            e(f"v_add_f32 v{SM+2*u}, v{b0}, v{b0+1}")
        for sw in ("v_permlane32_swap_b32", "v_permlane16_swap_b32"):
            for u in range(4):
                e(f"v_mov_b32 v{TC+u}, v{SM+2*u}")
            for u in range(4):
                e(f"{sw} v{SM+2*u}, v{TC+u}")
            for u in range(4):
                e(f"v_add_f32 v{SM+2*u}, v{SM+2*u}, v{TC+u}")
        for u in range(4):
            e(f"v_rcp_f32 v{SM+2*u}, v{SM+2*u}")
        for u in range(4):
            for hh in range(2):
                r = OB_ + 4 * u + 2 * hh
                e(f"v_pk_mul_f32 v[{r}:{r+1}], v[{r}:{r+1}], v[{SM+2*u}:{SM+2*u+1}] op_sel_hi:[1,0]")
        a("s_lshl_b32 s38, s29, 17")
        a("s_lshl_b32 s39, s43, 10")
        a("s_add_u32 s38, s38, s39")
        a(f"s_add_u32 s38, s38, {WS_O + 2 * w * 16384}")
        a("s_add_u32 s39, s38, 16384")
        for u, (t, hd) in enumerate(units):
            a(f"v_cvt_pk_bf16_f32 v{OUT+4*t+2*hd}, v{OB_+4*u}, v{OB_+4*u+1}")
            a(f"v_cvt_pk_bf16_f32 v{OUT+4*t+2*hd+1}, v{OB_+4*u+2}, v{OB_+4*u+3}")
        for t in range(2):
            a(f"buffer_store_dwordx4 v[{OUT+4*t}:{OUT+4*t+3}], v1, s[4:7], s{38+t} offen{SC1}")
        if w < 3:
            a(f"s_branch L_{label}_p1join")
    a.label(f"L_{label}_p1join")
    stamp(a, "p1 stored")


def gemm22_setup(a):
    a("s_and_b32 s30, s26, 1")
    a("s_lshr_b32 s31, s26, 1")
    a("s_lshl_b32 s29, s92, 2")
    a("s_lshl_b32 s32, s30, 1")
    a("s_add_u32 s29, s29, s32")
    a("s_add_u32 s33, s29, s31")
    a("s_xor_b32 s32, s31, 1")
    a("s_add_u32 s34, s29, s32")
    a("s_mov_b32 s29, s33")


def gemm22_reduce(a, bar, name, ACC, red_base):
    a("s_xor_b32 s36, s26, 2")
    a("s_lshl_b32 s36, s36, 12")
    a(f"s_add_u32 s36, s36, {red_base}")
    a("v_add_u32 v14, s36, v1")
    a("s_lshl_b32 s36, s26, 12")
    a(f"s_add_u32 s36, s36, {red_base}")
    a("v_add_u32 v15, s36, v1")
    for b in range(4):
        a(f"ds_write_b128 v14, v[{ACC+16+4*b}:{ACC+16+4*b+3}] offset:{b*1024}")
    a("s_waitcnt lgkmcnt(0)")
    bar(a, name)
    for b in range(4):
        a(f"ds_read_b128 v[{ACC+16+4*b}:{ACC+16+4*b+3}], v15 offset:{b*1024}")


P3_AD_ = 7


def c_phase2(a, label, bar):
    FR, TK, ACC, RB = 112, 48, 16, 240
    a("s_lshl_b32 s40, s25, 8")
    a("s_or_b32 s40, s40, s24")
    place_from(a, 40)
    gemm22_setup(a)
    tr_addr_perm(a)
    a("s_lshl_b32 s36, s31, 12")
    a("v_add_u32 v12, s36, v12")
    for b in range(4):
        a(f"v_xor_b32 v11, {b}, v8")
        a(f"v_lshl_add_u32 v{248+b}, v11, 5, v12")
    a("s_waitcnt vmcnt(0)")
    stamp(a, "p1 drained")
    bar(a, "S1")
    for i in range(8):
        for b in range(4):
            for h in range(2):
                r = FR + i * 16 + b * 4 + 2 * h
                a(f"ds_read_b64_tr_b16 v[{r}:{r+1}], v{248+b} offset:{P2_W + i*8192 + h*2048}")
    for i in range(32):
        a(f"v_mov_b32 v{ACC+i}, 0")
    a("v_lshlrev_b32 v7, 10, v6")
    a("v_lshl_add_u32 v7, v5, 3, v7")
    a("s_lshl_b32 s32, s29, 14")
    a("s_lshl_b32 s35, s93, 7")
    a("s_add_u32 s32, s32, s35")
    a("s_lshl_b32 s37, s31, 10")
    a("s_lshl_b32 s33, s33, 14")
    a("s_lshl_b32 s34, s34, 14")
    a(f"s_add_u32 s35, s33, {WS_H}")
    a("s_lshl_b32 s36, s93, 11")
    a("s_add_u32 s35, s35, s36")
    a("s_add_u32 s33, s33, s37")
    a("s_add_u32 s34, s34, s37")
    a("s_waitcnt lgkmcnt(0)")
    bar(a, "T1")
    for b in range(4):
        a(f"buffer_load_dwordx2 v[{RB+2*b}:{RB+2*b+1}], v7, s[8:11], s32 offen offset:{b*32}")
    a(f"v_mov_b32 v14, {LFLAG}")
    wait_lds(a, f"L_{label}_cf1", 14, 15, 64 + 4)
    stamp(a, "p2 flags ok")
    for i in range(8):
        for t in range(2):
            if i % 2 == 0 and i:
                a(f"s_add_u32 s{33+t}, s{33+t}, 4096")
            a(f"buffer_load_dwordx4 v[{TK+8*i+4*t}:{TK+8*i+4*t+3}], v1, s[4:7], s{33+t} offen offset:{(i % 2) * 2048}{SC1}")
    for i in range(8):
        a(f"s_waitcnt vmcnt({2 * (7 - i)})")
        if i == 0:
            stamp(a, "p2 first data")
        for t in (1, 0):
            for b in range(4):
                acc = ACC + 16 * t + 4 * b
                a(f"v_mfma_f32_16x16x32_bf16 v[{acc}:{acc+3}], v[{FR+i*16+4*b}:{FR+i*16+4*b+3}], v[{TK+8*i+4*t}:{TK+8*i+4*t+3}], v[{acc}:{acc+3}]")
    gemm22_reduce(a, bar, "R2", ACC, P2_RED)
    TMP = 48
    for b in range(4):
        for r in range(4):
            d = RB + 2 * b + r // 2
            if r % 2 == 0:
                a(f"v_lshlrev_b32 v{TMP+(b*4+r)}, 16, v{d}")
            else:
                a(f"v_and_b32 v{TMP+(b*4+r)}, 0xffff0000, v{d}")
    for i in range(8):
        a(f"v_pk_add_f32 v[{ACC+2*i}:{ACC+2*i+1}], v[{ACC+2*i}:{ACC+2*i+1}], v[{TMP+2*i}:{TMP+2*i+1}]")
    a("s_waitcnt lgkmcnt(0)")
    for i in range(8):
        a(f"v_pk_add_f32 v[{ACC+2*i}:{ACC+2*i+1}], v[{ACC+2*i}:{ACC+2*i+1}], v[{ACC+16+2*i}:{ACC+16+2*i+1}]")
    OB = 64
    for i in range(8):
        a(f"v_cvt_pk_bf16_f32 v{OB+i}, v{ACC+2*i}, v{ACC+2*i+1}")
    for hh in range(2):
        a(f"buffer_store_dwordx4 v[{OB+4*hh}:{OB+4*hh+3}], v1, s[4:7], s35 offen offset:{hh*1024}{SC1}")
    for d in range(8):
        a(f"v_lshlrev_b32 v{TMP+2*d}, 16, v{OB+d}")
        a(f"v_and_b32 v{TMP+2*d+1}, 0xffff0000, v{OB+d}")
    S0 = OB + 8; S1 = S0 + 1
    a(f"v_add_f32 v{S0}, v{TMP}, v{TMP+1}")
    a(f"v_mul_f32 v{S1}, v{TMP}, v{TMP}")
    a(f"v_fmac_f32 v{S1}, v{TMP+1}, v{TMP+1}")
    for i in range(2, 16):
        a(f"v_add_f32 v{S0}, v{S0}, v{TMP+i}")
        a(f"v_fmac_f32 v{S1}, v{TMP+i}, v{TMP+i}")
    C0, C1 = S0 + 2, S0 + 3
    for sw in ("v_permlane32_swap_b32", "v_permlane16_swap_b32"):
        a(f"v_mov_b32 v{C0}, v{S0}")
        a(f"v_mov_b32 v{C1}, v{S1}")
        a(f"{sw} v{S0}, v{C0}")
        a(f"{sw} v{S1}, v{C1}")
        a(f"v_add_f32 v{S0}, v{S0}, v{C0}")
        a(f"v_add_f32 v{S1}, v{S1}, v{C1}")
    a("v_lshlrev_b32 v14, 3, v6")
    a("s_lshl_b32 s39, s29, 10")
    a("s_lshl_b32 s40, s93, 7")
    a("s_add_u32 s39, s39, s40")
    a(f"s_add_u32 s39, s39, {WS_STATS}")
    a("s_mov_b64 exec, 0xffff")
    a(f"buffer_store_dwordx2 v[{S0}:{S1}], v14, s[4:7], s39 offen{SC1}")
    a("s_mov_b64 exec, -1")
    stamp(a, "p2 stored")
    a("s_waitcnt vmcnt(0)")
    stamp(a, "p2 drained")
    bar(a, "S2")


def c_phase3(a, label, bar):
    NS, D = 16, 4
    cA = -2.0 * 0.7978845608028654 * 1.4426950408889634
    AD = P3_AD_
    ACC, FB, TK, AB = 16, 128, 184, 248
    tr_addr_perm(a)
    for b in range(3):
        a(f"v_xor_b32 v11, {b}, v8")
        a(f"v_lshl_add_u32 v{243+b}, v11, 5, v12")
        a(f"v_add_u32 v{240+b}, {P3_G}, v{243+b}")
    a("v_xor_b32 v11, 3, v8")
    a("v_lshl_add_u32 v12, v11, 5, v9")
    a("v_and_b32 v11, 1, v10")
    a("v_lshl_add_u32 v12, v11, 3, v12")
    a("v_lshrrev_b32 v11, 1, v10")
    a("v_xor_b32 v11, 1, v11")
    a(f"v_mul_u32_u24 v11, {P3_G}, v11")
    a("v_add_u32 v246, v11, v12")
    for b in range(7):
        a(f"v_mov_b32 v{AD+b}, v{240+b}")
    a(f"v_mov_b32 v14, v{AD}")
    a(f"v_mov_b32 v15, v{AD+4}")
    for w in range(1, 4):
        a(f"s_cmp_eq_u32 s26, {w}")
        a("s_cselect_b64 vcc, -1, 0")
        a(f"v_cndmask_b32 v14, v14, v{AD+w}, vcc")
        a(f"v_cndmask_b32 v15, v15, v{AD+min(w+4,6)}, vcc")
    CF, CA, ONES = 112, 16, 24
    for s in range(16):
        for q in range(2):
            for h in range(2):
                r = CF + s * 8 + q * 4 + 2 * h
                a(f"ds_read_b64_tr_b16 v[{r}:{r+1}], v{14+q} offset:{s*4096 + h*2048}")
    for i in range(8):
        a(f"v_mov_b32 v{CA+i}, 0")
    for i in range(4):
        a(f"v_mov_b32 v{ONES+i}, 0x3f803f80")
    a("s_waitcnt lgkmcnt(0)")
    for s in range(16):
        for q in range(2):
            a(f"v_mfma_f32_16x16x32_bf16 v[{CA+4*q}:{CA+4*q+3}], v[{CF+s*8+4*q}:{CF+s*8+4*q+3}], v[{ONES}:{ONES+3}], v[{CA+4*q}:{CA+4*q+3}]")
    a("s_lshl_b32 s35, s26, 6")
    a(f"s_add_u32 s35, s35, {P3_CS}")
    a("v_lshlrev_b32 v14, 4, v5")
    a("v_add_u32 v15, s35, v14")
    a(f"v_add_u32 v14, {P3_CS}, v14")
    a("s_mov_b32 exec_lo, 0x00010001")
    a("s_mov_b32 exec_hi, 0x00010001")
    a(f"ds_write_b128 v15, v[{CA}:{CA+3}]")
    a(f"ds_write_b128 v15, v[{CA+4}:{CA+7}] offset:256")
    a("s_mov_b64 exec, -1")

    def reads(s):
        fb = FB + 28 * (s % 2)
        return [f"ds_read_b64_tr_b16 v[{fb+4*b+2*h}:{fb+4*b+2*h+1}], v{AD+b} offset:{s*4096 + h*2048}"
                for b in range(7) for h in range(2)]
    for x in reads(0):
        a(x)
    a("s_lshl_b32 s29, s94, 18")
    a("s_lshl_b32 s30, s26, 16")
    a("s_add_u32 s29, s29, s30")
    a(f"s_add_u32 s30, s29, {WS_H}")
    a("v_lshlrev_b32 v15, 3, v6")
    a("v_lshl_add_u32 v15, v5, 7, v15")
    a("s_lshl_b32 s33, s94, 14")
    a("s_lshl_b32 s34, s26, 12")
    a("s_add_u32 s33, s33, s34")
    a(f"s_add_u32 s33, s33, {WS_STATS}")
    a("s_waitcnt lgkmcnt(0)")
    stamp(a, "p3 colsum")
    a(f"v_mov_b32 v248, {LFLAG}")
    a("v_mov_b32 v249, 1")
    a("s_mov_b64 exec, 1")
    a("ds_add_u32 v248, v249 offset:96")
    a("s_mov_b64 exec, -1")
    wait_lds(a, f"L_{label}_cf2", 248, 249, 64 + 8)
    stamp(a, "p3 flags ok")
    vm = VM()

    def tok(s):
        slot = s % D
        return [f"s_add_u32 s32, s30, {t * 16384 + (s // 4) * 4096}\n"
                f"buffer_load_dwordx4 v[{TK+slot*16+4*t}:{TK+slot*16+4*t+3}], v1, s[4:7], s32 offen offset:{(s % 4) * 1024}{SC1}"
                for t in range(4)]
    for s in range(D):
        for x in tok(s):
            a(x); vm.add(("t", s))
    STR = TK
    for s in range(NS):
        slot = s % D
        fb = FB + 28 * (s % 2)
        a("s_waitcnt lgkmcnt(0)")
        vm.wait_for(a, lambda t: t[0] == "t" and t[1] <= s)
        if s == 0:
            stamp(a, "p3 first data")
        if "p3ts" in EXP and s in (2, 4, 6, 8, 10, 12, 14):
            stamp(a, f"p3 s{s}")
        if s == 15:
            wait_lds(a, f"L_{label}_ccs", 248, 249, 96, 4)
        M = []
        for t in range(4):
            for b in range(7):
                acc = ACC + (b * 4 + t) * 4
                csrc = "0" if s == 0 else f"v[{acc}:{acc+3}]"
                M.append(f"v_mfma_f32_16x16x32_bf16 v[{acc}:{acc+3}], v[{fb+4*b}:{fb+4*b+3}], v[{TK+slot*16+4*t}:{TK+slot*16+4*t+3}], {csrc}")
        R = reads(s + 1) if s + 1 < NS else []
        side = [(i, x) for i, x in enumerate(R)]
        if s + D < NS:
            side += [(7 * t + 6, x) for t, x in enumerate(tok(s + D))]
            for _ in range(4):
                vm.add(("t", s + D))
        if s == 12:
            for t in range(4):
                for q in range(2):
                    side.append((7 * t + 6, f"buffer_load_dwordx2 v[{STR+4*t+2*q}:{STR+4*t+2*q+1}], v15, s[4:7], s33 offen offset:{t*1024 + q*512}{SC1}"))
                    vm.add(("st", 0))
        if s == 15:
            side += [(b, f"ds_read_b128 v[{FB+4*b}:{FB+4*b+3}], v14 offset:{b*64}") for b in range(7)]
            sv = ["s_waitcnt vmcnt(0)"]
            for t in range(4):
                r = STR + 4 * t
                sv += [f"v_add_f32 v{r}, v{r}, v{r+2}", f"v_add_f32 v{r+1}, v{r+1}, v{r+3}"]
            for sw in ("v_permlane32_swap_b32", "v_permlane16_swap_b32"):
                for t in range(4):
                    r = STR + 4 * t
                    sv += [f"v_mov_b32 v{r+2}, v{r}", f"v_mov_b32 v{r+3}, v{r+1}"]
                for t in range(4):
                    r = STR + 4 * t
                    sv += [f"{sw} v{r}, v{r+2}", f"{sw} v{r+1}, v{r+3}"]
                for t in range(4):
                    r = STR + 4 * t
                    sv += [f"v_add_f32 v{r}, v{r}, v{r+2}", f"v_add_f32 v{r+1}, v{r+1}, v{r+3}"]
            for t in range(4):
                r = STR + 4 * t
                sv += [f"v_mul_f32 v{r}, {-1.0/512!r}, v{r}", f"v_mul_f32 v{r+1}, {1.0/512!r}, v{r+1}",
                       f"v_fma_f32 v{r+1}, -v{r}, v{r}, v{r+1}", f"v_max_f32 v{r+1}, 0, v{r+1}",
                       f"v_add_f32 v{r+2}, 0x3727c5ac, v{r+1}", f"v_rsq_f32 v{r+1}, v{r+2}",
                       f"v_mov_b32 v{r+3}, v{r}",
                       f"v_mul_f32 v{r}, {f2h(cA)}, v{r+1}", f"v_mul_f32 v{AB}, v{r+1}, v{r+1}",
                       f"v_mul_f32 v{r+1}, v{AB}, v{r}", f"v_mul_f32 v{r+1}, {f2h(0.044715)}, v{r+1}"]
            side += spread(sv, 0, 28)
        interleave(a, M, side)
    stamp(a, "p3 loop done")
    a("s_waitcnt lgkmcnt(0)")
    bar(a, "A3")
    CSR = FB
    T = 156
    KA_, KB_ = 204, 206
    cA = -2.0 * 0.7978845608028654 * 1.4426950408889634
    cB = cA * 0.044715
    e = a
    e("s_mov_b32 s56, 0")
    e("s_mov_b32 s57, -1")
    e("v_and_b32 v8, 1, v5")
    e("v_lshlrev_b32 v8, 8, v8")
    e("v_lshl_add_u32 v8, v6, 4, v8")
    e("v_lshrrev_b32 v9, 1, v5")
    e(f"v_mul_u32_u24 v10, {56*1024}, v9")
    e("v_add_u32 v8, v10, v8")
    e("v_and_b32 v11, 1, v5")
    e("v_lshl_add_u32 v9, v11, 1, v9")
    e(f"v_mul_u32_u24 v9, {56*1024}, v9")
    e("v_lshl_add_u32 v9, v6, 4, v9")
    e(f"s_mul_i32 s36, s94, {16 * 56 * 1024}")
    e(f"s_mul_i32 s37, s26, {4 * 56 * 1024}")
    e("s_add_u32 s36, s36, s37")
    e(f"s_mul_i32 s37, s95, {7 * 256}")
    e("s_add_u32 s36, s36, s37")
    e(f"s_add_u32 s36, s36, {WS_ACT}")

    def scale(r0, t):
        b = (r0 - ACC) // 16
        for h in range(2):
            e(f"v_pk_fma_f32 v[{r0+2*h}:{r0+2*h+1}], v[{CSR+4*b+2*h}:{CSR+4*b+2*h+1}], v[{STR+4*t+2}:{STR+4*t+3}], v[{r0+2*h}:{r0+2*h+1}] op_sel:[0,1,0] op_sel_hi:[1,1,1]")

    def geglu(gr, ur, outr, tb, kc):
        k1 = f"v[{kc}:{kc+1}]"; k2 = f"v[{kc+2}:{kc+3}]"
        for h in range(2):
            g = f"v[{gr+2*h}:{gr+2*h+1}]"
            t1 = f"v[{tb+4*h}:{tb+4*h+1}]"
            e(f"v_pk_mul_f32 {t1}, {g}, {g}")
            e(f"v_pk_fma_f32 {t1}, {t1}, {k1}, {k1} op_sel:[0,1,0] op_sel_hi:[1,1,0]")
            e(f"v_pk_mul_f32 {t1}, {t1}, {g}")
        for h in range(2):
            for x in range(2):
                e(f"v_exp_f32 v{tb+4*h+x}, v{tb+4*h+x}")
        for h in range(2):
            e(f"v_pk_mul_f32 v[{tb+4*h+2}:{tb+4*h+3}], v[{gr+2*h}:{gr+2*h+1}], v[{ur+2*h}:{ur+2*h+1}]")
            e(f"v_pk_fma_f32 v[{tb+4*h}:{tb+4*h+1}], v[{tb+4*h}:{tb+4*h+1}], {k2}, {k2} op_sel_hi:[1,0,0]")
        for h in range(2):
            for x in range(2):
                e(f"v_rcp_f32 v{tb+4*h+x}, v{tb+4*h+x}")
        for h in range(2):
            e(f"v_pk_mul_f32 v[{tb+4*h}:{tb+4*h+1}], v[{tb+4*h}:{tb+4*h+1}], v[{tb+4*h+2}:{tb+4*h+3}]")
        for h in range(2):
            e(f"v_cvt_pk_bf16_f32 v{outr+h}, v{tb+4*h}, v{tb+4*h+1}")

    A_ = lambda b, t: ACC + (b * 4 + t) * 4
    OA, OBB, OC = 208, 224, 232
    n = 0
    for t in range(4):
        for p in range(2):
            scale(A_(p, t), t); scale(A_(3 + p, t), t)
            geglu(A_(p, t), A_(3 + p, t), OA + 4 * t + 2 * p, T + 8 * (n % 3), STR + 4 * t); n += 1
        e(f"s_add_u32 s37, s36, {t * 56 * 1024}")
        e(f"buffer_store_dwordx4 v[{OA+4*t}:{OA+4*t+3}], v1, s[4:7], s37 offen{SC1}")
    for t in range(4):
        scale(A_(2, t), t); scale(A_(5, t), t)
        geglu(A_(2, t), A_(5, t), OBB + 4 * (t // 2) + 2 * (t % 2), T + 8 * (n % 3), STR + 4 * t); n += 1
        if t % 2 == 1:
            o = OBB + 4 * (t // 2)
            e(f"v_permlane32_swap_b32 v{o}, v{o+2}")
            e(f"v_permlane32_swap_b32 v{o+1}, v{o+3}")
            e(f"s_add_u32 s37, s36, {(t - 1) * 56 * 1024}")
            e(f"buffer_store_dwordx4 v[{o}:{o+3}], v8, s[4:7], s37 offen offset:1024{SC1}")
    for t in range(4):
        scale(A_(6, t), t)
    for t0 in (0, 2):
        for r in range(4):
            e(f"v_permlane32_swap_b32 v{A_(6, t0)+r}, v{A_(6, t0+1)+r}")
        for k in range(3):
            e(f"v_cndmask_b32 v{STR+4*t0+k}, v{STR+4*t0+k}, v{STR+4*t0+4+k}, s[56:57]")
        geglu(A_(6, t0), A_(6, t0 + 1), OC + t0, T + 8 * (n % 3), STR + 4 * t0); n += 1
    e(f"v_permlane16_swap_b32 v{OC}, v{OC+2}")
    e(f"v_permlane16_swap_b32 v{OC+1}, v{OC+3}")
    e(f"buffer_store_dwordx4 v[{OC}:{OC+3}], v9, s[4:7], s36 offen offset:1536{SC1}")
    stamp(a, "p3 stored")


def c_phase4(a, label, bar):
    NI, D = 28, 7
    ACC, FR, TK, AD, RB = 16, 48, 176, 236, 248
    gemm22_setup(a)
    a("v_bfe_u32 v12, v4, 2, 2")
    a("v_lshl_add_u32 v13, v5, 3, v12")
    a("v_lshlrev_b32 v13, 7, v13")
    a("v_and_b32 v14, 3, v4")
    a("v_lshl_add_u32 v13, v14, 3, v13")
    a("s_lshl_b32 s36, s31, 12")
    a("v_add_u32 v13, s36, v13")
    a("v_lshrrev_b32 v12, 1, v12")
    a("v_and_b32 v14, 1, v5")
    a("v_lshl_add_u32 v12, v14, 1, v12")
    for b in range(4):
        a(f"v_xor_b32 v14, {b}, v12")
        a(f"v_lshl_add_u32 v{AD+b}, v14, 5, v13")
        a(f"v_add_u32 v{AD+4+b}, 65536, v{AD+b}")
        a(f"v_add_u32 v{AD+8+b}, 131072, v{AD+b}")

    def rd(i):
        pos = (i % 20) * 8192
        base = AD + 4 * (pos // 65536)
        off = pos % 65536
        dst = FR + (i % 8) * 16
        return [f"ds_read_b64_tr_b16 v[{dst+4*b+2*h}:{dst+4*b+2*h+1}], v{base+b} offset:{off + h*512}"
                for b in range(4) for h in range(2)]
    a("s_waitcnt vmcnt(0)")
    stamp(a, "p3 drained")
    bar(a, "S3")
    for i in range(8):
        for x in rd(i):
            a(x)
    for i in range(32):
        a(f"v_mov_b32 v{ACC+i}, 0")
    srd(a, 20, 78, 2048 * 1024)
    a("v_lshlrev_b32 v7, 10, v6")
    a("v_lshl_add_u32 v7, v5, 3, v7")
    a("s_lshl_b32 s32, s29, 14")
    a("s_lshl_b32 s35, s93, 7")
    a("s_add_u32 s32, s32, s35")
    a("s_lshl_b32 s35, s29, 14")
    a("s_lshl_b32 s36, s93, 11")
    a("s_add_u32 s35, s35, s36")
    a(f"s_add_u32 s35, s35, {WS_H}")
    a("s_lshl_b32 s37, s31, 10")
    a(f"s_add_u32 s37, s37, {WS_ACT}")
    a(f"s_mul_i32 s33, s33, {56 * 1024}")
    a(f"s_mul_i32 s34, s34, {56 * 1024}")
    a("s_add_u32 s33, s33, s37")
    a("s_add_u32 s34, s34, s37")
    a("s_waitcnt lgkmcnt(0)")
    bar(a, "T3")
    for hh in range(2):
        a(f"buffer_load_dwordx4 v[{RB+4*hh}:{RB+4*hh+3}], v1, s[4:7], s35 offen offset:{hh*1024}{SC1}")
    bar(a, "F3")
    stamp(a, "p4 flags ok")
    vm = VM()

    def tok(i):
        out = []
        for t in range(2):
            r = TK + 8 * (i % D) + 4 * t
            pre = f"s_add_u32 s{33+t}, s{33+t}, 4096\n" if (i % 2 == 0 and i) else ""
            out.append(pre + f"buffer_load_dwordx4 v[{r}:{r+3}], v1, s[4:7], s{33+t} offen offset:{(i % 2) * 2048}{SC1}")
        return out
    for i in range(D):
        for x in tok(i):
            a(x); vm.add(i)
    for i in range(NI):
        if i >= 8:
            a("s_waitcnt lgkmcnt(8)" if i + 8 <= NI else "s_waitcnt lgkmcnt(0)")
        vm.wait_for(a, lambda t: t <= i)
        if i == 0:
            stamp(a, "p4 first data")
        if i == 8:
            bar(a, "M4")
        M = []
        for b in range(4):
            for t in range(2):
                acc = ACC + 16 * t + 4 * b
                fr = FR + (i % 8) * 16 + 4 * b
                r = TK + 8 * (i % D) + 4 * t
                M.append(f"v_mfma_f32_16x16x32_bf16 v[{acc}:{acc+3}], v[{fr}:{fr+3}], v[{r}:{r+3}], v[{acc}:{acc+3}]")
        side = []
        if i + 8 < NI:
            side += [(2 * (k // 2) + 1, x) for k, x in enumerate(rd(i + 8))]
        if i + D < NI:
            side += [(7, x) for x in tok(i + D)]
            vm.add(i + D); vm.add(i + D)
        interleave(a, M, side)
    stamp(a, "p4 loop done")
    bar(a, "Q4")
    gemm22_reduce(a, bar, "R4", ACC, 0)
    TMP = 48
    for b in range(4):
        for r in range(4):
            d = RB + 2 * b + r // 2
            if r % 2 == 0:
                a(f"v_lshlrev_b32 v{TMP+(b*4+r)}, 16, v{d}")
            else:
                a(f"v_and_b32 v{TMP+(b*4+r)}, 0xffff0000, v{d}")
    for i in range(8):
        a(f"v_pk_add_f32 v[{ACC+2*i}:{ACC+2*i+1}], v[{ACC+2*i}:{ACC+2*i+1}], v[{TMP+2*i}:{TMP+2*i+1}]")
    a("s_waitcnt lgkmcnt(0)")
    for i in range(8):
        a(f"v_pk_add_f32 v[{ACC+2*i}:{ACC+2*i+1}], v[{ACC+2*i}:{ACC+2*i+1}], v[{ACC+16+2*i}:{ACC+16+2*i+1}]")
    OB = 64
    for i in range(8):
        a(f"v_cvt_pk_bf16_f32 v{OB+i}, v{ACC+2*i}, v{ACC+2*i+1}")
    for b in range(4):
        a(f"buffer_store_dwordx2 v[{OB+2*b}:{OB+2*b+1}], v7, s[20:23], s32 offen offset:{b*32}" + (" sc1" if "outsc1" in EXP else (" nt" if "outnt" in EXP else "")))


def mega(label):
    a = Asm()
    common(a, label)
    bc, bh = Bars(), Bars()
    c_phase1(a, label, bc)
    c_phase2(a, label, bc)
    c_phase3(a, label, bc)
    c_phase4(a, label, bc)
    if TIMESTAMPS:
        a("s_waitcnt vmcnt(0)")
        stamp(a, "end")
        a("s_cmp_lg_u32 s26, 0")
        a(f"s_cbranch_scc1 L_end_{label}")
        if "dbgts" in EXP:
            a("s_cmp_lg_u32 s2, 133")
            a(f"s_cbranch_scc1 L_end_{label}")
            a("v_readlane_b32 s92, v2, 0")
            srd(a, 20, 80, 256)
            a("v_subrev_u32 v252, s92, v2")
            a("v_lshlrev_b32 v251, 2, v4")
            a("v_subrev_u32 v251, 12, v251")
            a(f"s_mov_b64 exec, {hex(((1 << 19) - 1) & ~15)}")
            a("buffer_store_dword v252, v251, s[20:23], 0 offen")
            a("s_endpgm")
        a("v_readlane_b32 s92, v2, 0")
        a("v_readlane_b32 s93, v3, 0")
        a("v_mov_b32 v252, s92\nv_mov_b32 v253, s93\nv_mov_b32 v254, v2\nv_mov_b32 v255, v3")
        a("v_lshlrev_b32 v251, 12, v4")
        a("s_lshl_b32 s92, s2, 4")
        a(f"s_add_u32 s92, s92, {WS_TS}")
        a(f"s_mov_b64 exec, {(1 << len(STAMPS)) - 1}")
        a("buffer_store_dwordx4 v[252:255], v251, s[4:7], s92 offen")
        print("stamps:", list(enumerate(STAMPS)))
    a.label(f"L_end_{label}")
    a("s_endpgm")
    helper(a, label, bh)
    assert bc.seq == bh.seq, (bc.seq, bh.seq)
    return a


def build(fn):
    label = f"{NAME}_kernel"
    a = mega(label)
    o = open(f"cdna_kernels/{NAME}.s.ref").read().split("; Override launch")[0].rstrip("\n").split("\n")
    o += ["; Persistent single kernel (generated by tools/gen_final.py): 256 workgroups x 8 waves (4 compute + 4 helper waves).",
          "; P1 LN1-folded QKV GEMM + dilated local attention, P2 WO + residual, P3 LN2-folded gate/up + GEGLU, P4 down + residual.",
          "; Phases hand data over through d_ws with write-through stores and epoch-tagged flag words (epoch published in d_debug)."]
    o.append("; @launch grid=(256,1,1) block=(512,1,1) lds=163840")
    o += ['.amdgcn_target "amdgcn-amd-amdhsa--gfx950"', ".text",
          f".globl {label}", ".p2align 8", f".type {label},@function", f"{label}:"]
    o += a.lines
    o += ['.section .rodata,"a"', ".p2align 6", f".amdhsa_kernel {label}",
          "  .amdhsa_next_free_vgpr 256", "  .amdhsa_next_free_sgpr 102", "  .amdhsa_accum_offset 256",
          "  .amdhsa_group_segment_fixed_size 0", "  .amdhsa_kernarg_size 80", "  .amdhsa_user_sgpr_count 2",
          "  .amdhsa_user_sgpr_kernarg_segment_ptr 1", "  .amdhsa_system_sgpr_workgroup_id_x 1",
          ".end_amdhsa_kernel"]
    open(fn, "w").write("\n".join(o) + "\n")


if __name__ == "__main__":
    import argparse
    ap = argparse.ArgumentParser()
    ap.add_argument("--ts", action="store_true")
    ap.add_argument("--exp", default="")
    ap.add_argument("-o", default=f"cdna_kernels/{NAME}.s")
    args = ap.parse_args()
    TIMESTAMPS = args.ts
    EXP = set(args.exp.split(",")) if args.exp else set()
    EXP |= {"prio", "pmask", "psleep8"}
    for e in EXP:
        if e.startswith("warmat"): WARM_AT = int(e[6:])
    build(args.o)
```
